```python
import torch

def _softmax(x, axis=-1):
    return torch.softmax(x, dim=axis)
def _gelu(x):
    return torch.nn.functional.gelu(x, approximate="tanh")
def _silu(x):
    return torch.nn.functional.silu(x)
def _sigmoid(x):
    return torch.sigmoid(x)
def _layernorm(x, axis=-1, eps=1e-5):
    m = x.mean(dim=axis, keepdim=True)
    v = x.var(dim=axis, keepdim=True, unbiased=False)
    return (x - m) / torch.sqrt(v + eps)
def _scatter_add(tgt, idx, src, axis=0):
    return tgt.clone().index_add_(axis, idx, src)
def _segment_sum(src, seg, n):
    out = torch.zeros((n,) + src.shape[1:], dtype=src.dtype)
    return out.index_add_(0, seg, src)
def _pad(x, pw):
    flat = tuple(v for pair in reversed(pw) for v in pair)
    return torch.nn.functional.pad(x, flat)

kernel_name = 'standalone__glu_gated_geglu__prompt'

def setup_inputs():

    _w = (lambda a: (lambda t: t.to(torch.bfloat16) if t.is_floating_point() else t)(torch.as_tensor(a)))
    B, S, Dm, Df = 1, 2048, 640, 1536
    return {
        "x": _w((lambda *s: torch.randn(*s, dtype=torch.bfloat16) * 0.05)(B, S, Dm)),
        "w_gate": _w((lambda *s: torch.randn(*s, dtype=torch.bfloat16) * 0.05)(Dm, Df) * (Dm ** -0.5)),
        "w_up": _w((lambda *s: torch.randn(*s, dtype=torch.bfloat16) * 0.05)(Dm, Df) * (Dm ** -0.5)),
        "w_down": _w((lambda *s: torch.randn(*s, dtype=torch.bfloat16) * 0.05)(Df, Dm) * (Df ** -0.5)),
    }

def reference(x, w_gate, w_up, w_down):
    g = torch.einsum("bsd,df->bsf", x, w_gate)
    u = torch.einsum("bsd,df->bsf", x, w_up)
    h = _gelu(g) * u
    return torch.einsum("bsf,fd->bsd", h, w_down)
```

```python
import re

def regs(kind, lo, n=1):
    return {(kind, lo + i) for i in range(n)}

def R(kind, lo, n=1):
    return f"{kind}{lo}" if n == 1 else f"{kind}[{lo}:{lo+n-1}]"

class Asm:
    def __init__(self):
        self.lines = []
        self.lq = []
        self.vq = []
    def e(self, s):
        for l in s.split("\n"):
            l = l.strip()
            if l: self.lines.append(l if l.endswith(":") else "    " + l)
    def label(self, s): self.lines.append(s + ":")
    def c(self, s): self.lines.append("    ; " + s)
    def lds(self, s, tags=()):
        self.e(s); self.lq.append(set(tags))
    def vm(self, s, tags=()):
        self.e(s); self.vq.append(set(tags))
    def _cnt(self, q, tags):
        last = -1
        for i, t in enumerate(q):
            if t & tags: last = i
        return last
    def need(self, tags):
        tags = set(tags)
        l = self._cnt(self.lq, tags); v = self._cnt(self.vq, tags)
        parts = []
        if v >= 0:
            n = len(self.vq) - v - 1; assert n <= 63, n
            parts.append(f"vmcnt({n})"); self.vq = self.vq[v+1:]
        if l >= 0:
            n = len(self.lq) - l - 1; assert n <= 15, n
            parts.append(f"lgkmcnt({n})"); self.lq = self.lq[l+1:]
        if parts: self.e("s_waitcnt " + " ".join(parts))
    def wait(self, vm=None, lgkm=None):
        parts = []
        if vm is not None:
            parts.append(f"vmcnt({vm})"); self.vq = self.vq[len(self.vq)-vm:] if vm else []
        if lgkm is not None:
            parts.append(f"lgkmcnt({lgkm})"); self.lq = self.lq[len(self.lq)-lgkm:] if lgkm else []
        self.e("s_waitcnt " + " ".join(parts))
    def text(self): return "\n".join(self.lines) + "\n"

def f32hex(x):
    import struct
    return "0x%08x" % struct.unpack("<I", struct.pack("<f", x))[0]
```

```python
import math, sys
from asmlib import *

NAME = "standalone__glu_gated_geglu__prompt"
H_OFF, WD_OFF, WS_BYTES = 0, 0x600000, 0x900000
OOB = 0x40000000
STAGE = 40960
K0 = -2.0 * math.log2(math.e) * math.sqrt(2.0 / math.pi)
K1 = K0 * 0.044715

SX, SG_, SU, SD, SW, SO, SDBG = 8, 12, 16, 20, 24, 28, 32
def srd(n): return f"s[{n}:{n+3}]"

def load_args(a):
    a.e("s_load_dwordx8 s[68:75], s[0:1], 0")
    a.e("s_load_dwordx4 s[76:79], s[0:1], 32")
    a.e("s_load_dwordx2 s[80:81], s[0:1], 48")
def mk_srd(a, n, p, size):
    a.e(f"s_mov_b32 s{n}, s{p}\ns_mov_b32 s{n+1}, s{p+1}\ns_mov_b32 s{n+2}, {size}\ns_mov_b32 s{n+3}, 0x20000")

XF = [32, 52]; WF = [40, 60]
ACC = 160
def acc(i, jm): return ACC + 16 * (2 * i + jm)

def p1_reads(a, s, st):
    out = []
    def rx(jm):
        d = XF[st] + 4 * jm
        return lambda: a.lds(f"ds_read_b128 {R('v',d,4)}, v{12+s} offset:{4096*jm}", regs('v', d, 4))
    def rw(i, j):
        d = WF[st] + 4 * i + 2 * j
        return lambda: a.lds(f"ds_read_b64_tr_b16 {R('v',d,2)}, v{16+i} offset:{16384+(16*s+4*j)*192}", regs('v', d, 2))
    return [rx(0), rw(0,0), rw(0,1), rx(1), rw(1,0), rw(1,1), rw(2,0), rw(2,1)]

def p1_mfma(a, st, i, jm, first=False):
    A = WF[st] + 4 * i; B = XF[st] + 4 * jm; D = acc(i, jm)
    a.need(regs('v', A, 4) | regs('v', B, 4))
    a.e(f"v_mfma_f32_32x32x16_bf16 {R('v',D,16)}, {R('v',A,4)}, {R('v',B,4)}, {'0' if first else R('v',D,16)}")

def dma_ops(a, tag):
    ops = []
    def mk(m0src, v, sr, so, off):
        def f():
            if m0src is not None:
                a.e(f"s_add_u32 m0, s42, s{m0src}\ns_nop 0")
            a.vm(f"buffer_load_dwordx4 v{v}, {srd(sr)}, s{so} offen offset:{off} lds", {tag})
        return f
    for i in range(4): ops.append(mk(43 if i == 0 else None, 2 + i, SX, 40, 1024 * i))
    for i in range(3): ops.append(mk(44 if i == 0 else None, 6 + i, SG_, 41, 1024 * i))
    for i in range(3): ops.append(mk(45 if i == 0 else None, 9 + i, SU, 41, 1024 * i))
    return ops
def dma_advance(a):
    a.e("s_add_u32 s40, s40, 128\ns_add_u32 s41, s41, 196608\ns_cmp_eq_u32 s40, 1280\ns_cselect_b32 s40, 0, s40\ns_cselect_b32 s41, 0, s41")
    a.e(f"s_add_u32 s42, s42, {STAGE}\ns_cmp_eq_u32 s42, {3*STAGE}\ns_cselect_b32 s42, 0, s42")
def rd_advance_s(a):
    a.e(f"s_add_u32 s46, s46, {STAGE}\ns_cmp_eq_u32 s46, {3*STAGE}\ns_cselect_b32 s47, {(-2*STAGE) & 0xffffffff:#x}, s49\ns_cselect_b32 s46, 0, s46")

def body(a, t_kind, dma_tag, wait_tag, extra=None):
    dm = dma_ops(a, dma_tag) if dma_tag else []
    dma_pos = {(0,4):0,(0,5):1,(1,3):2,(1,4):3,(1,5):4,(2,3):5,(2,4):6,(2,5):7,(3,2):8,(3,3):9}
    order = [(0,0),(0,1),(1,0),(1,1),(2,0),(2,1)]
    for seg in range(4):
        rd = p1_reads(a, seg, seg % 2)
        st = (seg + 1) % 2
        for g, (i, jm) in enumerate(order):
            if not (seg == 0 and t_kind == 'first'):
                p1_mfma(a, st, i, jm, first=(t_kind == 'first' and seg == 1))
            if g < 4:
                rd[2*g](); rd[2*g+1]()
            if dm and (seg, g) in dma_pos: dm[dma_pos[(seg, g)]]()
            if seg == 0 and g == 1: rd_advance_s(a)
            if seg == 3 and g == 4 and t_kind != 'last':
                for v in range(12, 16): a.e(f"v_add_u32 v{v}, s47, v{v}")
                if dm: dma_advance(a)
            if seg == 3 and g == 5 and t_kind != 'last':
                for v in range(16, 19): a.e(f"v_add_u32 v{v}, s47, v{v}")
            if extra and (seg, g) in extra: extra[(seg, g)]()
    if t_kind != 'last':
        l = a._cnt(a.vq, {wait_tag})
        a.wait(vm=len(a.vq) - l - 1, lgkm=0)
        a.e("s_barrier")

def gelu_block(a, A, T, P):
    for p in range(4): a.e(f"v_pk_mul_f32 {R('v',T+2*p,2)}, {R('v',A+2*p,2)}, {R('v',A+2*p,2)}")
    for p in range(4): a.e(f"v_pk_fma_f32 {R('v',T+2*p,2)}, {R('v',T+2*p,2)}, v[20:21], v[22:23]")
    for p in range(4): a.e(f"v_pk_mul_f32 {R('v',T+2*p,2)}, {R('v',T+2*p,2)}, {R('v',A+2*p,2)}")
    for r in range(8): a.e(f"v_exp_f32 v{T+r}, v{T+r}")
    for p in range(4): a.e(f"v_pk_add_f32 {R('v',T+2*p,2)}, {R('v',T+2*p,2)}, 1.0 op_sel_hi:[1,0]")
    for r in range(8): a.e(f"v_rcp_f32 v{T+r}, v{T+r}")
    for p in range(4): a.e(f"v_pk_mul_f32 {R('v',T+2*p,2)}, {R('v',T+2*p,2)}, {R('v',A+2*p,2)}")
    for p in range(4): a.e(f"v_pk_mul_f32 {R('v',T+2*p,2)}, {R('v',T+2*p,2)}, {R('v',A+8+2*p,2)}")
    for p in range(4): a.e(f"v_cvt_pk_bf16_f32 v{P+p}, v{T+2*p}, v{T+2*p+1}")

def kernel_a():
    a = Asm()
    a.e("s_cmp_ge_u32 s2, 256\ns_cbranch_scc1 LA_end")
    load_args(a)
    a.e("v_lshrrev_b32 v20, 6, v0\nv_and_b32 v1, 63, v0")
    a.e("v_readfirstlane_b32 s36, v20")
    a.c("wg decode")
    a.e("""s_and_b32 s39, s2, 7
      s_lshr_b32 s54, s2, 3
      s_lshr_b32 s55, s54, 2
      s_and_b32 s56, s54, 3
      s_lshr_b32 s37, s39, 2
      s_lshl_b32 s37, s37, 3
      s_add_u32 s37, s37, s55
      s_and_b32 s38, s39, 3
      s_lshl_b32 s38, s38, 2
      s_add_u32 s38, s38, s56
      s_mul_i32 s57, s56, 5
      s_lshr_b32 s57, s57, 1
      s_add_u32 s57, s57, s55
      s_sub_u32 s58, s57, 10
      s_cmp_ge_u32 s57, 10
      s_cselect_b32 s57, s58, s57
      s_lshl_b32 s40, s57, 7
      s_mul_i32 s41, s57, 196608
      s_mov_b32 s42, 0
      s_lshl_b32 s43, s36, 12
      s_mul_i32 s44, s36, 3072
      s_add_u32 s45, s44, 28672
      s_add_u32 s44, s44, 16384
      s_mov_b32 s46, 0""")
    a.e(f"s_mov_b32 s49, {STAGE}")
    a.c("x DMA voffsets v2..v5")
    a.e("""s_lshl_b32 s58, s37, 7
      s_lshl_b32 s59, s36, 5
      s_add_u32 s58, s58, s59
      v_lshrrev_b32 v20, 3, v1
      v_add_u32 v20, s58, v20
      v_mul_u32_u24 v20, 1280, v20
      v_lshrrev_b32 v21, 4, v1
      v_and_b32 v22, 7, v1
      v_xor_b32 v23, v22, v21
      v_lshl_add_u32 v2, v23, 4, v20
      v_xor_b32 v23, 4, v23
      v_lshl_add_u32 v3, v23, 4, v20""")
    a.e(f"v_add_u32 v4, {2*(10240-1024)}, v2\nv_add_u32 v3, {10240-1024}, v3\nv_add_u32 v5, {2*(10240-1024)}, v3")
    a.c("g/u DMA voffsets v6..v8, v9..v11")
    a.e("s_mul_i32 s58, s36, 192\ns_mul_i32 s59, s38, 192")
    for i in range(3):
        a.e(f"""v_add_u32 v20, s58, v1
          v_add_u32 v20, {64*i}, v20
          v_mul_u32_u24 v21, 43691, v20
          v_lshrrev_b32 v21, 19, v21
          v_mul_u32_u24 v22, 12, v21
          v_sub_u32 v22, v20, v22
          v_mul_u32_u24 v21, 3072, v21
          v_add_u32 v21, s59, v21
          v_subrev_u32 v21, {1024*i}, v21
          v_lshl_add_u32 v{6+i}, v22, 4, v21
          v_xor_b32 v22, 2, v22
          v_lshl_add_u32 v{9+i}, v22, 4, v21""")
    a.e("s_waitcnt lgkmcnt(0)")
    mk_srd(a, SX, 68, 2048*640*2); mk_srd(a, SG_, 70, 640*1536*2); mk_srd(a, SU, 72, 640*1536*2)
    for f in dma_ops(a, 'T0'): f()
    dma_advance(a)
    mk_srd(a, SD, 74, 1536*640*2); mk_srd(a, SW, 80, WS_BYTES)
    a.c("raw Wd piece: 16 rows x 160 B per wave (waves 0..2), jn = wg&7, B = 3*(wg>>3)+wave")
    a.e(f"""s_mul_i32 s58, s54, 3
      s_add_u32 s58, s58, s36
      s_mul_i32 s59, s58, {16*1280}
      s_mul_i32 s60, s39, 160
      s_add_u32 s59, s59, s60
      s_cmp_eq_u32 s36, 3
      s_cselect_b32 s61, {OOB:#x}, 0
      s_add_u32 s59, s59, s61""")
    for i in range(3):
        a.e(f"""v_add_u32 v20, {64*i}, v1
          v_mul_u32_u24 v21, 6554, v20
          v_lshrrev_b32 v21, 16, v21
          v_mul_u32_u24 v22, 10, v21
          v_sub_u32 v22, v20, v22
          v_mul_u32_u24 v21, 1280, v21
          v_lshl_add_u32 v21, v22, 4, v21
          v_add_u32 v21, s59, v21
          v_subrev_u32 v{72+i}, {1024*i}, v21""")
    a.e(f"v_mov_b32 v20, {OOB:#x}\nv_cmp_gt_u32 vcc, 32, v1\ns_mul_i32 s62, s36, 3072\ns_add_u32 s62, s62, {3*STAGE}\nv_cndmask_b32 v74, v20, v74, vcc")
    a.e("s_mov_b32 m0, s62\ns_nop 0")
    for i in range(3): a.vm(f"buffer_load_dwordx4 v{72+i}, {srd(SD)}, 0 offen offset:{1024*i} lds", {'WR'})
    for f in dma_ops(a, 'T1'): f()
    dma_advance(a)
    a.c("LDS read addresses: x v12..v15, W v16..v18")
    a.e("""s_lshr_b32 s63, s36, 1
      s_and_b32 s64, s36, 1
      v_and_b32 v20, 31, v1
      v_lshrrev_b32 v21, 5, v1
      v_bfe_u32 v22, v1, 1, 3
      v_xor_b32 v22, v22, v21
      s_lshl_b32 s65, s63, 13
      v_lshlrev_b32 v23, 7, v20
      v_add_u32 v23, s65, v23""")
    for s in range(4):
        a.e(f"v_xor_b32 v24, {2*s}, v22\nv_lshl_add_u32 v{12+s}, v24, 4, v23")
    a.e("""v_bfe_u32 v20, v1, 4, 1
      v_bfe_u32 v22, v1, 2, 2
      v_lshl_add_u32 v22, v21, 3, v22
      v_mul_u32_u24 v22, 192, v22
      v_and_b32 v23, 3, v1
      v_lshl_add_u32 v22, v23, 3, v22
      v_mul_u32_u24 v23, 12288, v20
      v_add_u32 v22, v22, v23
      s_mul_i32 s65, s64, 3""")
    for i in range(3):
        a.e(f"s_add_u32 s66, s65, {i}\nv_xor_b32 v23, s66, v20\nv_lshl_add_u32 v{16+i}, v23, 5, v22")
    a.c("H store voffset v19, soffsets s52/s53")
    a.e(f"""v_bfe_u32 v20, v1, 4, 1
      v_mul_u32_u24 v20, 49152, v20
      v_lshl_add_u32 v20, v21, 8, v20
      v_and_b32 v22, 15, v1
      v_lshl_add_u32 v19, v22, 4, v20
      s_lshl_b32 s52, s37, 3
      s_lshl_b32 s66, s63, 2
      s_add_u32 s52, s52, s66
      s_mul_i32 s52, s52, 49152
      s_mul_i32 s66, s38, 6
      s_add_u32 s66, s66, s65
      s_lshl_b32 s66, s66, 9
      s_add_u32 s52, s52, s66
      s_add_u32 s53, s52, {2*49152}""")
    a.c("re-tiling: tr-read address v75, store voffsets v88/v89")
    a.e(f"""v_bfe_u32 v20, v1, 4, 1
      v_bfe_u32 v22, v1, 2, 2
      v_lshl_add_u32 v22, v20, 2, v22
      v_mul_u32_u24 v22, 160, v22
      v_lshl_add_u32 v22, v21, 5, v22
      v_and_b32 v23, 3, v1
      v_lshl_add_u32 v22, v23, 3, v22
      v_add_u32 v75, s62, v22
      s_lshr_b32 s59, s58, 1
      s_mul_i32 s59, s59, 5120
      s_and_b32 s60, s58, 1
      s_lshl_b32 s60, s60, 9
      s_add_u32 s59, s59, s60
      s_mul_i32 s60, s39, 245760
      s_add_u32 s59, s59, s60
      s_add_u32 s59, s59, s61
      s_add_u32 s59, s59, {WD_OFF}
      v_and_b32 v22, 31, v1
      v_lshlrev_b32 v22, 4, v22
      v_lshl_add_u32 v22, v21, 10, v22
      v_add_u32 v88, s59, v22
      v_add_u32 v89, 4096, v88
      v_mov_b32 v20, {OOB:#x}
      v_cndmask_b32 v89, v20, v89, vcc""")
    a.e(f"v_mov_b32 v20, {f32hex(K1)}\nv_mov_b32 v21, {f32hex(K1)}\nv_mov_b32 v22, {f32hex(K0)}\nv_mov_b32 v23, {f32hex(K0)}")
    a.need({'T0', 'WR'})
    a.e("s_barrier")
    for o in range(3):
        for j in range(2):
            d = 76 + 4*o + 2*j
            a.lds(f"ds_read_b64_tr_b16 {R('v',d,2)}, v75 offset:{64*o+1280*j}", regs('v', d, 2))
    def wst(o):
        def f():
            d = 76 + 4*o
            a.need(regs('v', d, 4))
            a.vm(f"buffer_store_dwordx4 {R('v',d,4)}, v{88 if o < 2 else 89}, {srd(SW)}, 0 offen offset:{2048*o if o < 2 else 0}", {'WS'})
        return f
    body(a, 'first', 'T2', 'T1', extra={(0,1): wst(0), (0,2): wst(1), (0,3): wst(2)})
    a.e("s_mov_b32 s48, 7")
    a.label("LA_loop")
    a.vq = [{'P'}] * 10
    body(a, 'mid', 'N', 'P')
    a.e("s_sub_u32 s48, s48, 1\ns_cmp_lg_u32 s48, 0\ns_cbranch_scc1 LA_loop")
    a.vq = [{'P'}] * 10
    body(a, 'mid', None, 'P')
    body(a, 'last', None, None)
    for (i, jm) in [(0,0),(0,1),(1,0),(1,1),(2,0),(2,1)]:
        p1_mfma(a, 1, i, jm)
    a.e("s_nop 7")
    n = 0
    for i in range(3):
        for jm in range(2):
            T = 32 + 8 * (n % 2); P = 48 + 4 * (n % 4); n += 1
            gelu_block(a, acc(i, jm), T, P)
            a.vm(f"buffer_store_dwordx4 {R('v',P,4)}, v19, {srd(SW)}, s{52+jm} offen offset:{512*i}")
    a.label("LA_end")
    a.e("s_endpgm")
    return a.text()

HR = 32; ACC2 = [96, 116]; PART = 136
def kernel_b():
    a = Asm()
    a.e("s_cmp_ge_u32 s2, 256\ns_cbranch_scc1 LB_end")
    load_args(a)
    a.e("v_lshrrev_b32 v20, 6, v0\nv_and_b32 v1, 63, v0")
    a.e("v_readfirstlane_b32 s36, v20")
    a.c("m64 = s37, jn = s38, rho = s39, rho2 = s40")
    a.e(f"""s_and_b32 s39, s2, 7
      s_lshr_b32 s54, s2, 3
      s_lshr_b32 s37, s54, 3
      s_lshl_b32 s39, s39, 2
      s_add_u32 s37, s37, s39
      s_and_b32 s38, s54, 7
      s_and_b32 s39, s38, 3
      s_lshr_b32 s40, s38, 2
      s_lshl_b32 s40, s40, 1
      s_add_u32 s40, s40, s37
      s_mul_i32 s41, s36, 12
      s_mul_i32 s42, s38, 245760
      s_add_u32 s42, s42, {WD_OFF}""")
    for g in range(4):
        a.e(f"s_add_u32 s43, s40, {g}\ns_and_b32 s43, s43, 3\ns_mul_i32 s43, s43, 3\ns_add_u32 s43, s43, s41\ns_lshl_b32 s{44+g}, s43, 10\ns_mul_i32 s43, s43, 5120\ns_add_u32 s{48+g}, s43, s42")
    for q in range(4):
        a.e(f"s_add_u32 s43, s36, {q+1}\ns_and_b32 s43, s43, 3")
        if q < 3: a.e(f"s_mul_i32 s{56+q}, s43, 15360\ns_add_u32 s{56+q}, s{56+q}, {5120*q}")
        a.e(f"s_add_u32 s43, s43, s39\ns_and_b32 s43, s43, 3\ns_lshl_b32 s60, s37, 2\ns_add_u32 s60, s60, s43\ns_mul_i32 s{52+q}, s60, 49152")
    a.c("s60 = own m16 block")
    a.e("v_lshlrev_b32 v2, 4, v1\nv_add_u32 v3, 4096, v2\nv_add_u32 v4, 8192, v2\nv_add_u32 v5, 12288, v2")
    a.e("s_waitcnt lgkmcnt(0)")
    mk_srd(a, SW, 80, WS_BYTES); mk_srd(a, SO, 76, 2048*640*2)
    loads = []
    def lw(s, b):
        g, idx = s // 3, (s % 3) * 5 + b
        d = (s * 5 + b) * 4
        return lambda: a.vm(f"buffer_load_dwordx4 {R('a',d,4)}, v{2+idx//4}, {srd(SW)}, s{48+g} offen offset:{1024*(idx%4)}", regs('a', d, 4))
    def lh(n):
        q, s = n // 12, n % 12
        d = HR + 4 * (n % 16)
        def f():
            if s % 3 == 0: a.e(f"s_add_u32 s61, s{52+q}, s{44+s//3}")
            a.vm(f"buffer_load_dwordx4 {R('v',d,4)}, v2, {srd(SW)}, s61 offen offset:{1024*(s%3)}", regs('v', d, 4))
        return f
    hidx = {}
    for s in range(12):
        for b in range(5): loads.append(lw(s, b))
        hidx[s] = len(loads); loads.append(lh(s))
    for n in range(12, 48):
        hidx[n] = len(loads); loads.append(lh(n))
    pos = 0
    AHEAD = 12
    while pos <= hidx[0] + AHEAD: loads[pos](); pos += 1
    a.c("LDS addresses")
    a.e("""v_add_u32 v6, s56, v2
      v_add_u32 v7, s57, v2
      v_add_u32 v8, s58, v2
      s_mul_i32 s62, s36, 15360
      v_add_u32 v9, s62, v2
      s_mul_i32 s62, s36, 2816
      s_add_u32 s62, s62, 61440
      v_and_b32 v20, 15, v1
      v_mul_u32_u24 v20, 176, v20
      v_lshrrev_b32 v21, 4, v1
      v_lshl_add_u32 v20, v21, 3, v20
      v_add_u32 v10, s62, v20
      s_mul_i32 s63, s60, 20480
      s_mul_i32 s64, s38, 160
      s_add_u32 s63, s63, s64""")
    for i in range(3):
        a.e(f"""v_add_u32 v20, {64*i}, v1
          v_mul_u32_u24 v21, 6554, v20
          v_lshrrev_b32 v21, 16, v21
          v_mul_u32_u24 v22, 10, v21
          v_sub_u32 v22, v20, v22
          v_mul_u32_u24 v23, 176, v21
          v_lshl_add_u32 v23, v22, 4, v23
          v_add_u32 v{11+i}, s62, v23
          v_mul_u32_u24 v21, 1280, v21
          v_lshl_add_u32 v21, v22, 4, v21
          v_add_u32 v{14+i}, s63, v21""")
    a.e(f"v_mov_b32 v20, {OOB:#x}\nv_cmp_gt_u32 vcc, 32, v1\nv_mov_b32 v21, s62\ns_nop 0\nv_cndmask_b32 v16, v20, v16, vcc\nv_cndmask_b32 v13, v21, v13, vcc")
    for n in range(48):
        q, s = n // 12, n % 12
        C = ACC2[q % 2]; Pv = ACC2[(q + 1) % 2]
        for b in range(5):
            A = (s * 5 + b) * 4; B = HR + 4 * (n % 16)
            a.need(regs('a', A, 4) | regs('v', B, 4))
            a.e(f"v_mfma_f32_16x16x32_bf16 {R('v',C+4*b,4)}, {R('a',A,4)}, {R('v',B,4)}, {'0' if s == 0 else R('v',C+4*b,4)}")
            nxt = hidx[n + 1] + AHEAD if n + 1 < 48 else len(loads)
            rem = min(nxt + 1, len(loads)) - pos
            k = -(-rem // (5 - b)) if rem > 0 else 0
            for _ in range(k): loads[pos](); pos += 1
            if q > 0 and s == 2:
                a.lds(f"ds_write_b128 v{6+q-1}, {R('v',Pv+4*b,4)} offset:{1024*b}", {'PW'})
            if q == 3 and s == 4 and b == 4:
                a.need({'PW'}); a.e("s_barrier")
            if q == 3 and s in (5, 6, 7):
                d = PART + 20 * (s - 5) + 4 * b
                a.lds(f"ds_read_b128 {R('v',d,4)}, v9 offset:{5120*(s-5)+1024*b}", regs('v', d, 4))
            if q == 3 and s in (9, 10):
                d0 = PART + 4 * b; d1 = PART + 20 * (s - 8) + 4 * b
                a.need(regs('v', d0, 4) | regs('v', d1, 4))
                for h in range(2): a.e(f"v_pk_add_f32 {R('v',d0+2*h,2)}, {R('v',d0+2*h,2)}, {R('v',d1+2*h,2)}")
    C = ACC2[1]
    a.e("s_nop 3")
    for b in range(5):
        for h in range(2): a.e(f"v_pk_add_f32 {R('v',PART+4*b+2*h,2)}, {R('v',PART+4*b+2*h,2)}, {R('v',C+4*b+2*h,2)}")
    for b in range(5):
        for h in range(2): a.e(f"v_cvt_pk_bf16_f32 v{200+2*b+h}, v{PART+4*b+2*h}, v{PART+4*b+2*h+1}")
        a.lds(f"ds_write_b64 v10, {R('v',200+2*b,2)} offset:{32*b}", {'OW'})
    a.need({'OW'})
    for i in range(3): a.lds(f"ds_read_b128 {R('v',212+4*i,4)}, v{11+i}", regs('v', 212+4*i, 4))
    for i in range(3):
        a.need(regs('v', 212+4*i, 4))
        a.vm(f"buffer_store_dwordx4 {R('v',212+4*i,4)}, v{14+i}, {srd(SO)}, 0 offen")
    a.label("LB_end")
    a.e("s_endpgm")
    return a.text()

def kd(name, vgpr, acc_off):
    return f""".p2align 6
.amdhsa_kernel {name}
  .amdhsa_next_free_vgpr {vgpr}
  .amdhsa_next_free_sgpr 102
  .amdhsa_accum_offset {acc_off}
  .amdhsa_group_segment_fixed_size 0
  .amdhsa_kernarg_size 56
  .amdhsa_user_sgpr_count 2
  .amdhsa_user_sgpr_kernarg_segment_ptr 1
  .amdhsa_system_sgpr_workgroup_id_x 1
  .amdhsa_float_denorm_mode_32 3
.end_amdhsa_kernel
"""
def head(name): return f".globl {name}\n.p2align 8\n.type {name},@function\n{name}:\n"

if __name__ == "__main__":
    out = f"""; GEGLU MLP: out = (gelu_tanh(x Wg) * (x Wu)) Wd ; x[2048,640] Wg,Wu[640,1536] Wd[1536,640] bf16
; @launch kernel=geglu_a_kernel grid=(256,1,1) block=(256,1,1) lds={3*STAGE+4*3072}
; @launch kernel=geglu_b_kernel grid=(256,1,1) block=(256,1,1) lds={61440+4*2816}
.amdgcn_target "amdgcn-amd-amdhsa--gfx950"
.text
""" + head("geglu_a_kernel") + kernel_a() + head("geglu_b_kernel") + kernel_b() + '.section .rodata,"a"\n' + kd("geglu_a_kernel", 256, 256) + kd("geglu_b_kernel", 512, 256)
    open(sys.argv[1] if len(sys.argv) > 1 else f"cdna_kernels/{NAME}.s", "w").write(out)
```

```python
import math, sys
from asmlib import *

NAME = "standalone__glu_gated_geglu__prompt"
H_OFF, WD_OFF, WS_BYTES = 0, 0x600000, 0x900000
OOB = 0x40000000
STAGE = 40960
K0 = -2.0 * math.log2(math.e) * math.sqrt(2.0 / math.pi)
K1 = K0 * 0.044715

SX, SG_, SU, SD, SW, SO, SDBG = 8, 12, 16, 20, 24, 28, 32
def srd(n): return f"s[{n}:{n+3}]"

STAMPS = False
ST_OFF = 0x800000
def stamp(a, i):
    if STAMPS: a.e(f"s_memrealtime s[{84+2*i}:{85+2*i}]")
def dump_stamps(a, n, kern):
    if not STAMPS: return
    a.e("s_waitcnt vmcnt(0)")
    stamp(a, n - 1)
    a.e(f"s_waitcnt lgkmcnt(0)\ns_lshl_b32 s82, s2, 2\ns_add_u32 s82, s82, s36\ns_lshl_b32 s82, s82, 5\ns_add_u32 s82, s82, {ST_OFF + kern * 0x10000}\nv_mov_b32 v30, s82\ns_mov_b64 exec, 1")
    for i in range(n):
        a.e(f"v_mov_b32 v31, s{84+2*i}\nbuffer_store_dword v31, v30, {srd(SW)}, 0 offen offset:{4*i}\ns_nop 1")
def dump_dbg(a, n):
    mk_srd(a, SDBG, 78, 256)
    a.e("s_cmp_lg_u32 s36, 0\ns_cbranch_scc1 Ldbg_skip%d" % n)
    a.e("s_and_b32 s82, s2, 0x7f\ns_cmp_lg_u32 s82, 0x7f\ns_cbranch_scc1 Ldbg_skip%d" % n)
    a.e("s_lshr_b32 s82, s2, 7\ns_lshl_b32 s82, s82, 5\nv_mov_b32 v30, s82")
    for i in range(7):
        a.e(f"v_mov_b32 v31, s{84+2*i}\nbuffer_store_dword v31, v30, {srd(SDBG)}, 0 offen offset:{4*i}\ns_nop 1")
    a.label("Ldbg_skip%d" % n)
def load_args(a):
    a.e("s_load_dwordx8 s[68:75], s[0:1], 0")
    a.e("s_load_dwordx4 s[76:79], s[0:1], 32")
    a.e("s_load_dwordx2 s[80:81], s[0:1], 48")
def mk_srd(a, n, p, size):
    a.e(f"s_mov_b32 s{n}, s{p}\ns_mov_b32 s{n+1}, s{p+1}\ns_mov_b32 s{n+2}, {size}\ns_mov_b32 s{n+3}, 0x20000")

XF = [32, 52]; WF = [40, 60]
ACC = 160
def acc(i, jm): return ACC + 16 * (2 * i + jm)

def p1_reads(a, s, st):
    out = []
    def rx(jm):
        d = XF[st] + 4 * jm
        return lambda: a.lds(f"ds_read_b128 {R('v',d,4)}, v{12+s} offset:{4096*jm}", regs('v', d, 4))
    def rw(i, j):
        d = WF[st] + 4 * i + 2 * j
        return lambda: a.lds(f"ds_read_b64_tr_b16 {R('v',d,2)}, v{16+i} offset:{16384+(16*s+4*j)*192}", regs('v', d, 2))
    return [rx(0), rw(0,0), rw(0,1), rx(1), rw(1,0), rw(1,1), rw(2,0), rw(2,1)]

def p1_mfma(a, st, i, jm, first=False):
    A = WF[st] + 4 * i; B = XF[st] + 4 * jm; D = acc(i, jm)
    a.need(regs('v', A, 4) | regs('v', B, 4))
    a.e(f"v_mfma_f32_32x32x16_bf16 {R('v',D,16)}, {R('v',A,4)}, {R('v',B,4)}, {'0' if first else R('v',D,16)}")

def dma_ops(a, tag):
    ops = []
    def mk(m0src, v, sr, so, off):
        def f():
            if m0src is not None:
                a.e(f"s_add_u32 m0, s42, s{m0src}\ns_nop 0")
            a.vm(f"buffer_load_dwordx4 v{v}, {srd(sr)}, s{so} offen offset:{off} lds", {tag})
        return f
    for i in range(4): ops.append(mk(43 if i == 0 else None, 2 + i, SX, 40, 1024 * i))
    for i in range(3): ops.append(mk(44 if i == 0 else None, 6 + i, SG_, 41, 1024 * i))
    for i in range(3): ops.append(mk(45 if i == 0 else None, 9 + i, SU, 41, 1024 * i))
    return ops
def dma_advance(a):
    a.e("s_add_u32 s40, s40, 128\ns_add_u32 s41, s41, 196608\ns_cmp_eq_u32 s40, 1280\ns_cselect_b32 s40, 0, s40\ns_cselect_b32 s41, 0, s41")
    a.e(f"s_add_u32 s42, s42, {STAGE}\ns_cmp_eq_u32 s42, {3*STAGE}\ns_cselect_b32 s42, 0, s42")
def rd_advance_s(a):
    a.e(f"s_add_u32 s46, s46, {STAGE}\ns_cmp_eq_u32 s46, {3*STAGE}\ns_cselect_b32 s47, {(-2*STAGE) & 0xffffffff:#x}, s49\ns_cselect_b32 s46, 0, s46")

def body(a, t_kind, dma_tag, wait_tag, extra=None):
    dm = dma_ops(a, dma_tag) if dma_tag else []
    dma_pos = {(0,4):0,(0,5):1,(1,3):2,(1,4):3,(1,5):4,(2,3):5,(2,4):6,(2,5):7,(3,2):8,(3,3):9}
    order = [(0,0),(0,1),(1,0),(1,1),(2,0),(2,1)]
    for seg in range(4):
        rd = p1_reads(a, seg, seg % 2)
        st = (seg + 1) % 2
        for g, (i, jm) in enumerate(order):
            if not (seg == 0 and t_kind == 'first'):
                p1_mfma(a, st, i, jm, first=(t_kind == 'first' and seg == 1))
            if g < 4:
                rd[2*g](); rd[2*g+1]()
            if dm and (seg, g) in dma_pos: dm[dma_pos[(seg, g)]]()
            if seg == 0 and g == 1: rd_advance_s(a)
            if seg == 3 and g == 4 and t_kind != 'last':
                for v in range(12, 16): a.e(f"v_add_u32 v{v}, s47, v{v}")
                if dm: dma_advance(a)
            if seg == 3 and g == 5 and t_kind != 'last':
                for v in range(16, 19): a.e(f"v_add_u32 v{v}, s47, v{v}")
            if extra and (seg, g) in extra: extra[(seg, g)]()
    if t_kind != 'last':
        l = a._cnt(a.vq, {wait_tag})
        a.wait(vm=len(a.vq) - l - 1, lgkm=0)
        a.e("s_barrier")

def gelu_block(a, A, T, P):
    for p in range(4): a.e(f"v_pk_mul_f32 {R('v',T+2*p,2)}, {R('v',A+2*p,2)}, {R('v',A+2*p,2)}")
    for p in range(4): a.e(f"v_pk_fma_f32 {R('v',T+2*p,2)}, {R('v',T+2*p,2)}, v[20:21], v[22:23]")
    for p in range(4): a.e(f"v_pk_mul_f32 {R('v',T+2*p,2)}, {R('v',T+2*p,2)}, {R('v',A+2*p,2)}")
    for r in range(8): a.e(f"v_exp_f32 v{T+r}, v{T+r}")
    for p in range(4): a.e(f"v_pk_add_f32 {R('v',T+2*p,2)}, {R('v',T+2*p,2)}, 1.0 op_sel_hi:[1,0]")
    for r in range(8): a.e(f"v_rcp_f32 v{T+r}, v{T+r}")
    for p in range(4): a.e(f"v_pk_mul_f32 {R('v',T+2*p,2)}, {R('v',T+2*p,2)}, {R('v',A+2*p,2)}")
    for p in range(4): a.e(f"v_pk_mul_f32 {R('v',T+2*p,2)}, {R('v',T+2*p,2)}, {R('v',A+8+2*p,2)}")
    for p in range(4): a.e(f"v_cvt_pk_bf16_f32 v{P+p}, v{T+2*p}, v{T+2*p+1}")

def kernel_a():
    a = Asm()
    a.e("s_cmp_ge_u32 s2, 256\ns_cbranch_scc1 LA_end")
    stamp(a, 0)
    load_args(a)
    a.e("v_lshrrev_b32 v20, 6, v0\nv_and_b32 v1, 63, v0")
    a.e("v_readfirstlane_b32 s36, v20")
    a.c("wg decode")
    a.e("""s_and_b32 s39, s2, 7
      s_lshr_b32 s54, s2, 3
      s_lshr_b32 s55, s54, 2
      s_and_b32 s56, s54, 3
      s_lshr_b32 s37, s39, 2
      s_lshl_b32 s37, s37, 3
      s_add_u32 s37, s37, s55
      s_and_b32 s38, s39, 3
      s_lshl_b32 s38, s38, 2
      s_add_u32 s38, s38, s56
      s_mul_i32 s57, s56, 5
      s_lshr_b32 s57, s57, 1
      s_add_u32 s57, s57, s55
      s_sub_u32 s58, s57, 10
      s_cmp_ge_u32 s57, 10
      s_cselect_b32 s57, s58, s57
      s_lshl_b32 s40, s57, 7
      s_mul_i32 s41, s57, 196608
      s_mov_b32 s42, 0
      s_lshl_b32 s43, s36, 12
      s_mul_i32 s44, s36, 3072
      s_add_u32 s45, s44, 28672
      s_add_u32 s44, s44, 16384
      s_mov_b32 s46, 0""")
    a.e(f"s_mov_b32 s49, {STAGE}")
    a.c("x DMA voffsets v2..v5")
    a.e("""s_lshl_b32 s58, s37, 7
      s_lshl_b32 s59, s36, 5
      s_add_u32 s58, s58, s59
      v_lshrrev_b32 v20, 3, v1
      v_add_u32 v20, s58, v20
      v_mul_u32_u24 v20, 1280, v20
      v_lshrrev_b32 v21, 4, v1
      v_and_b32 v22, 7, v1
      v_xor_b32 v23, v22, v21
      v_lshl_add_u32 v2, v23, 4, v20
      v_xor_b32 v23, 4, v23
      v_lshl_add_u32 v3, v23, 4, v20""")
    a.e(f"v_add_u32 v4, {2*(10240-1024)}, v2\nv_add_u32 v3, {10240-1024}, v3\nv_add_u32 v5, {2*(10240-1024)}, v3")
    a.c("g/u DMA voffsets v6..v8, v9..v11")
    a.e("s_mul_i32 s58, s36, 192\ns_mul_i32 s59, s38, 192")
    for i in range(3):
        a.e(f"""v_add_u32 v20, s58, v1
          v_add_u32 v20, {64*i}, v20
          v_mul_u32_u24 v21, 43691, v20
          v_lshrrev_b32 v21, 19, v21
          v_mul_u32_u24 v22, 12, v21
          v_sub_u32 v22, v20, v22
          v_mul_u32_u24 v21, 3072, v21
          v_add_u32 v21, s59, v21
          v_subrev_u32 v21, {1024*i}, v21
          v_lshl_add_u32 v{6+i}, v22, 4, v21
          v_xor_b32 v22, 2, v22
          v_lshl_add_u32 v{9+i}, v22, 4, v21""")
    a.e("s_waitcnt lgkmcnt(0)")
    mk_srd(a, SX, 68, 2048*640*2); mk_srd(a, SG_, 70, 640*1536*2); mk_srd(a, SU, 72, 640*1536*2)
    for f in dma_ops(a, 'T0'): f()
    dma_advance(a)
    mk_srd(a, SD, 74, 1536*640*2); mk_srd(a, SW, 80, WS_BYTES)
    a.c("raw Wd piece: 16 rows x 160 B per wave (waves 0..2), jn = wg&7, B = 3*(wg>>3)+wave")
    a.e(f"""s_mul_i32 s58, s54, 3
      s_add_u32 s58, s58, s36
      s_mul_i32 s59, s58, {16*1280}
      s_mul_i32 s60, s39, 160
      s_add_u32 s59, s59, s60
      s_cmp_eq_u32 s36, 3
      s_cselect_b32 s61, {OOB:#x}, 0
      s_add_u32 s59, s59, s61""")
    for i in range(3):
        a.e(f"""v_add_u32 v20, {64*i}, v1
          v_mul_u32_u24 v21, 6554, v20
          v_lshrrev_b32 v21, 16, v21
          v_mul_u32_u24 v22, 10, v21
          v_sub_u32 v22, v20, v22
          v_mul_u32_u24 v21, 1280, v21
          v_lshl_add_u32 v21, v22, 4, v21
          v_add_u32 v21, s59, v21
          v_subrev_u32 v{72+i}, {1024*i}, v21""")
    a.e(f"v_mov_b32 v20, {OOB:#x}\nv_cmp_gt_u32 vcc, 32, v1\ns_mul_i32 s62, s36, 3072\ns_add_u32 s62, s62, {3*STAGE}\nv_cndmask_b32 v74, v20, v74, vcc")
    a.e("s_mov_b32 m0, s62\ns_nop 0")
    for i in range(3): a.vm(f"buffer_load_dwordx4 v{72+i}, {srd(SD)}, 0 offen offset:{1024*i} lds", {'WR'})
    for f in dma_ops(a, 'T1'): f()
    dma_advance(a)
    a.c("LDS read addresses: x v12..v15, W v16..v18")
    a.e("""s_lshr_b32 s63, s36, 1
      s_and_b32 s64, s36, 1
      v_and_b32 v20, 31, v1
      v_lshrrev_b32 v21, 5, v1
      v_bfe_u32 v22, v1, 1, 3
      v_xor_b32 v22, v22, v21
      s_lshl_b32 s65, s63, 13
      v_lshlrev_b32 v23, 7, v20
      v_add_u32 v23, s65, v23""")
    for s in range(4):
        a.e(f"v_xor_b32 v24, {2*s}, v22\nv_lshl_add_u32 v{12+s}, v24, 4, v23")
    a.e("""v_bfe_u32 v20, v1, 4, 1
      v_bfe_u32 v22, v1, 2, 2
      v_lshl_add_u32 v22, v21, 3, v22
      v_mul_u32_u24 v22, 192, v22
      v_and_b32 v23, 3, v1
      v_lshl_add_u32 v22, v23, 3, v22
      v_mul_u32_u24 v23, 12288, v20
      v_add_u32 v22, v22, v23
      s_mul_i32 s65, s64, 3""")
    for i in range(3):
        a.e(f"s_add_u32 s66, s65, {i}\nv_xor_b32 v23, s66, v20\nv_lshl_add_u32 v{16+i}, v23, 5, v22")
    a.c("H store voffset v19, soffsets s52/s53")
    a.e(f"""v_bfe_u32 v20, v1, 4, 1
      v_mul_u32_u24 v20, 49152, v20
      v_lshl_add_u32 v20, v21, 8, v20
      v_and_b32 v22, 15, v1
      v_lshl_add_u32 v19, v22, 4, v20
      s_lshl_b32 s52, s37, 3
      s_lshl_b32 s66, s63, 2
      s_add_u32 s52, s52, s66
      s_mul_i32 s52, s52, 49152
      s_mul_i32 s66, s38, 6
      s_add_u32 s66, s66, s65
      s_lshl_b32 s66, s66, 9
      s_add_u32 s52, s52, s66
      s_add_u32 s53, s52, {2*49152}""")
    a.c("re-tiling: tr-read address v75, store voffsets v88/v89")
    a.e(f"""v_bfe_u32 v20, v1, 4, 1
      v_bfe_u32 v22, v1, 2, 2
      v_lshl_add_u32 v22, v20, 2, v22
      v_mul_u32_u24 v22, 160, v22
      v_lshl_add_u32 v22, v21, 5, v22
      v_and_b32 v23, 3, v1
      v_lshl_add_u32 v22, v23, 3, v22
      v_add_u32 v75, s62, v22
      s_lshr_b32 s59, s58, 1
      s_mul_i32 s59, s59, 5120
      s_and_b32 s60, s58, 1
      s_lshl_b32 s60, s60, 9
      s_add_u32 s59, s59, s60
      s_mul_i32 s60, s39, 245760
      s_add_u32 s59, s59, s60
      s_add_u32 s59, s59, s61
      s_add_u32 s59, s59, {WD_OFF}
      v_and_b32 v22, 31, v1
      v_lshlrev_b32 v22, 4, v22
      v_lshl_add_u32 v22, v21, 10, v22
      v_add_u32 v88, s59, v22
      v_add_u32 v89, 4096, v88
      v_mov_b32 v20, {OOB:#x}
      v_cndmask_b32 v89, v20, v89, vcc""")
    a.e(f"v_mov_b32 v20, {f32hex(K1)}\nv_mov_b32 v21, {f32hex(K1)}\nv_mov_b32 v22, {f32hex(K0)}\nv_mov_b32 v23, {f32hex(K0)}")
    stamp(a, 1)
    a.need({'T0', 'WR'})
    a.e("s_barrier")
    stamp(a, 2)
    if STAMPS: a.e("s_waitcnt lgkmcnt(0)")
    for o in range(3):
        for j in range(2):
            d = 76 + 4*o + 2*j
            a.lds(f"ds_read_b64_tr_b16 {R('v',d,2)}, v75 offset:{64*o+1280*j}", regs('v', d, 2))
    def wst(o):
        def f():
            d = 76 + 4*o
            a.need(regs('v', d, 4))
            a.vm(f"buffer_store_dwordx4 {R('v',d,4)}, v{88 if o < 2 else 89}, {srd(SW)}, 0 offen offset:{2048*o if o < 2 else 0}", {'WS'})
        return f
    body(a, 'first', 'T2', 'T1', extra={(0,1): wst(0), (0,2): wst(1), (0,3): wst(2)})
    a.e("s_mov_b32 s48, 7")
    a.label("LA_loop")
    a.vq = [{'P'}] * 10
    body(a, 'mid', 'N', 'P')
    a.e("s_sub_u32 s48, s48, 1\ns_cmp_lg_u32 s48, 0\ns_cbranch_scc1 LA_loop")
    stamp(a, 3)
    if STAMPS: a.e("s_waitcnt lgkmcnt(0)")
    a.vq = [{'P'}] * 10
    body(a, 'mid', None, 'P')
    body(a, 'last', None, None)
    for (i, jm) in [(0,0),(0,1),(1,0),(1,1),(2,0),(2,1)]:
        p1_mfma(a, 1, i, jm)
    a.e("s_nop 7")
    stamp(a, 4)
    n = 0
    for i in range(3):
        for jm in range(2):
            T = 32 + 8 * (n % 2); P = 48 + 4 * (n % 4); n += 1
            gelu_block(a, acc(i, jm), T, P)
            a.vm(f"buffer_store_dwordx4 {R('v',P,4)}, v19, {srd(SW)}, s{52+jm} offen offset:{512*i}")
    stamp(a, 5)
    dump_stamps(a, 7, 0)
    if STAMPS: dump_dbg(a, 0)
    a.label("LA_end")
    a.e("s_endpgm")
    return a.text()

HR = 32; ACC2 = [96, 116]; PART = 136
def kernel_b():
    a = Asm()
    a.e("s_cmp_ge_u32 s2, 256\ns_cbranch_scc1 LB_end")
    stamp(a, 0)
    load_args(a)
    a.e("v_lshrrev_b32 v20, 6, v0\nv_and_b32 v1, 63, v0")
    a.e("v_readfirstlane_b32 s36, v20")
    a.c("m64 = s37, jn = s38, rho = s39, rho2 = s40")
    a.e(f"""s_and_b32 s39, s2, 7
      s_lshr_b32 s54, s2, 3
      s_lshr_b32 s37, s54, 3
      s_lshl_b32 s39, s39, 2
      s_add_u32 s37, s37, s39
      s_and_b32 s38, s54, 7
      s_and_b32 s39, s38, 3
      s_lshr_b32 s40, s38, 2
      s_lshl_b32 s40, s40, 1
      s_add_u32 s40, s40, s37
      s_mul_i32 s41, s36, 12
      s_mul_i32 s42, s38, 245760
      s_add_u32 s42, s42, {WD_OFF}""")
    for g in range(4):
        a.e(f"s_add_u32 s43, s40, {g}\ns_and_b32 s43, s43, 3\ns_mul_i32 s43, s43, 3\ns_add_u32 s43, s43, s41\ns_lshl_b32 s{44+g}, s43, 10\ns_mul_i32 s43, s43, 5120\ns_add_u32 s{48+g}, s43, s42")
    for q in range(4):
        a.e(f"s_add_u32 s43, s36, {q+1}\ns_and_b32 s43, s43, 3")
        if q < 3: a.e(f"s_mul_i32 s{56+q}, s43, 15360\ns_add_u32 s{56+q}, s{56+q}, {5120*q}")
        a.e(f"s_add_u32 s43, s43, s39\ns_and_b32 s43, s43, 3\ns_lshl_b32 s60, s37, 2\ns_add_u32 s60, s60, s43\ns_mul_i32 s{52+q}, s60, 49152")
    a.c("s60 = own m16 block")
    a.e("v_lshlrev_b32 v2, 4, v1\nv_add_u32 v3, 4096, v2\nv_add_u32 v4, 8192, v2\nv_add_u32 v5, 12288, v2")
    a.e("s_waitcnt lgkmcnt(0)")
    mk_srd(a, SW, 80, WS_BYTES); mk_srd(a, SO, 76, 2048*640*2)
    loads = []
    def lw(s, b):
        g, idx = s // 3, (s % 3) * 5 + b
        d = (s * 5 + b) * 4
        return lambda: a.vm(f"buffer_load_dwordx4 {R('a',d,4)}, v{2+idx//4}, {srd(SW)}, s{48+g} offen offset:{1024*(idx%4)}", regs('a', d, 4))
    def lh(n):
        q, s = n // 12, n % 12
        d = HR + 4 * (n % 16)
        def f():
            if s % 3 == 0: a.e(f"s_add_u32 s61, s{52+q}, s{44+s//3}")
            a.vm(f"buffer_load_dwordx4 {R('v',d,4)}, v2, {srd(SW)}, s61 offen offset:{1024*(s%3)}", regs('v', d, 4))
        return f
    hidx = {}
    for s in range(12):
        for b in range(5): loads.append(lw(s, b))
        hidx[s] = len(loads); loads.append(lh(s))
    for n in range(12, 48):
        hidx[n] = len(loads); loads.append(lh(n))
    pos = 0
    AHEAD = 12
    while pos <= hidx[0] + AHEAD: loads[pos](); pos += 1
    a.c("LDS addresses")
    a.e("""v_add_u32 v6, s56, v2
      v_add_u32 v7, s57, v2
      v_add_u32 v8, s58, v2
      s_mul_i32 s62, s36, 15360
      v_add_u32 v9, s62, v2
      s_mul_i32 s62, s36, 2816
      s_add_u32 s62, s62, 61440
      v_and_b32 v20, 15, v1
      v_mul_u32_u24 v20, 176, v20
      v_lshrrev_b32 v21, 4, v1
      v_lshl_add_u32 v20, v21, 3, v20
      v_add_u32 v10, s62, v20
      s_mul_i32 s63, s60, 20480
      s_mul_i32 s64, s38, 160
      s_add_u32 s63, s63, s64""")
    for i in range(3):
        a.e(f"""v_add_u32 v20, {64*i}, v1
          v_mul_u32_u24 v21, 6554, v20
          v_lshrrev_b32 v21, 16, v21
          v_mul_u32_u24 v22, 10, v21
          v_sub_u32 v22, v20, v22
          v_mul_u32_u24 v23, 176, v21
          v_lshl_add_u32 v23, v22, 4, v23
          v_add_u32 v{11+i}, s62, v23
          v_mul_u32_u24 v21, 1280, v21
          v_lshl_add_u32 v21, v22, 4, v21
          v_add_u32 v{14+i}, s63, v21""")
    a.e(f"v_mov_b32 v20, {OOB:#x}\nv_cmp_gt_u32 vcc, 32, v1\nv_mov_b32 v21, s62\ns_nop 0\nv_cndmask_b32 v16, v20, v16, vcc\nv_cndmask_b32 v13, v21, v13, vcc")
    for n in range(48):
        q, s = n // 12, n % 12
        if s == 1:
            stamp(a, 1 + q)
            if STAMPS: a.e("s_waitcnt lgkmcnt(0)"); a.lq = []
        C = ACC2[q % 2]; Pv = ACC2[(q + 1) % 2]
        for b in range(5):
            A = (s * 5 + b) * 4; B = HR + 4 * (n % 16)
            a.need(regs('a', A, 4) | regs('v', B, 4))
            a.e(f"v_mfma_f32_16x16x32_bf16 {R('v',C+4*b,4)}, {R('a',A,4)}, {R('v',B,4)}, {'0' if s == 0 else R('v',C+4*b,4)}")
            nxt = hidx[n + 1] + AHEAD if n + 1 < 48 else len(loads)
            rem = min(nxt + 1, len(loads)) - pos
            k = -(-rem // (5 - b)) if rem > 0 else 0
            for _ in range(k): loads[pos](); pos += 1
            if q > 0 and s == 2:
                a.lds(f"ds_write_b128 v{6+q-1}, {R('v',Pv+4*b,4)} offset:{1024*b}", {'PW'})
            if q == 3 and s == 4 and b == 4:
                a.need({'PW'}); a.e("s_barrier")
            if q == 3 and s in (5, 6, 7):
                d = PART + 20 * (s - 5) + 4 * b
                a.lds(f"ds_read_b128 {R('v',d,4)}, v9 offset:{5120*(s-5)+1024*b}", regs('v', d, 4))
            if q == 3 and s in (9, 10):
                d0 = PART + 4 * b; d1 = PART + 20 * (s - 8) + 4 * b
                a.need(regs('v', d0, 4) | regs('v', d1, 4))
                for h in range(2): a.e(f"v_pk_add_f32 {R('v',d0+2*h,2)}, {R('v',d0+2*h,2)}, {R('v',d1+2*h,2)}")
    C = ACC2[1]
    a.e("s_nop 3")
    for b in range(5):
        for h in range(2): a.e(f"v_pk_add_f32 {R('v',PART+4*b+2*h,2)}, {R('v',PART+4*b+2*h,2)}, {R('v',C+4*b+2*h,2)}")
    for b in range(5):
        for h in range(2): a.e(f"v_cvt_pk_bf16_f32 v{200+2*b+h}, v{PART+4*b+2*h}, v{PART+4*b+2*h+1}")
        a.lds(f"ds_write_b64 v10, {R('v',200+2*b,2)} offset:{32*b}", {'OW'})
    a.need({'OW'})
    for i in range(3): a.lds(f"ds_read_b128 {R('v',212+4*i,4)}, v{11+i}", regs('v', 212+4*i, 4))
    for i in range(3):
        a.need(regs('v', 212+4*i, 4))
        a.vm(f"buffer_store_dwordx4 {R('v',212+4*i,4)}, v{14+i}, {srd(SO)}, 0 offen")
    stamp(a, 5)
    dump_stamps(a, 7, 1)
    if STAMPS: dump_dbg(a, 1)
    a.label("LB_end")
    a.e("s_endpgm")
    return a.text()

def kd(name, vgpr, acc_off):
    return f""".p2align 6
.amdhsa_kernel {name}
  .amdhsa_next_free_vgpr {vgpr}
  .amdhsa_next_free_sgpr 102
  .amdhsa_accum_offset {acc_off}
  .amdhsa_group_segment_fixed_size 0
  .amdhsa_kernarg_size 56
  .amdhsa_user_sgpr_count 2
  .amdhsa_user_sgpr_kernarg_segment_ptr 1
  .amdhsa_system_sgpr_workgroup_id_x 1
  .amdhsa_float_denorm_mode_32 3
.end_amdhsa_kernel
"""
def head(name): return f".globl {name}\n.p2align 8\n.type {name},@function\n{name}:\n"

if __name__ == "__main__":
    STAMPS = len(sys.argv) > 2 and sys.argv[2] == "st"
    out = f"""; GEGLU MLP: out = (gelu_tanh(x Wg) * (x Wu)) Wd ; x[2048,640] Wg,Wu[640,1536] Wd[1536,640] bf16
; @launch kernel=geglu_a_kernel grid=(256,1,1) block=(256,1,1) lds={3*STAGE+4*3072}
; @launch kernel=geglu_b_kernel grid=(256,1,1) block=(256,1,1) lds={61440+4*2816}
.amdgcn_target "amdgcn-amd-amdhsa--gfx950"
.text
""" + head("geglu_a_kernel") + kernel_a() + head("geglu_b_kernel") + kernel_b() + '.section .rodata,"a"\n' + kd("geglu_a_kernel", 256, 256) + kd("geglu_b_kernel", 512, 256)
    open(sys.argv[1] if len(sys.argv) > 1 else f"cdna_kernels/{NAME}.s", "w").write(out)
```

```python
import math, sys
from asmlib import *

NAME = "standalone__glu_gated_geglu__prompt"
H_OFF, WD_OFF, WS_BYTES = 0, 0x600000, 0x900000
OOB = 0x40000000
STAGE = 40960
K0 = -2.0 * math.log2(math.e) * math.sqrt(2.0 / math.pi)
K1 = K0 * 0.044715

SX, SG_, SU, SD, SW, SO, SDBG = 8, 12, 16, 20, 24, 28, 32
def srd(n): return f"s[{n}:{n+3}]"

STAMPS = False
ST_OFF = 0x800000
def stamp(a, i):
    if STAMPS: a.e(f"s_memrealtime s[{84+2*i}:{85+2*i}]")
def dump_stamps(a, n, kern):
    if not STAMPS: return
    a.e("s_waitcnt vmcnt(0)")
    stamp(a, n - 1)
    a.e(f"s_waitcnt lgkmcnt(0)\ns_lshl_b32 s82, s2, 2\ns_add_u32 s82, s82, s36\ns_lshl_b32 s82, s82, 5\ns_add_u32 s82, s82, {ST_OFF + kern * 0x10000}\nv_mov_b32 v30, s82\ns_mov_b64 exec, 1")
    for i in range(n):
        a.e(f"v_mov_b32 v31, s{84+2*i}\nbuffer_store_dword v31, v30, {srd(SW)}, 0 offen offset:{4*i}\ns_nop 1")
def dump_dbg(a, n):
    mk_srd(a, SDBG, 78, 256)
    a.e("s_cmp_lg_u32 s36, 0\ns_cbranch_scc1 Ldbg_skip%d" % n)
    a.e("s_and_b32 s82, s2, 0x7f\ns_cmp_lg_u32 s82, 0x7f\ns_cbranch_scc1 Ldbg_skip%d" % n)
    a.e("s_lshr_b32 s82, s2, 7\ns_lshl_b32 s82, s82, 5\nv_mov_b32 v30, s82")
    for i in range(7):
        a.e(f"v_mov_b32 v31, s{84+2*i}\nbuffer_store_dword v31, v30, {srd(SDBG)}, 0 offen offset:{4*i}\ns_nop 1")
    if n == 1:
        a.e("s_cmp_lg_u32 s2, 255\ns_cbranch_scc1 Ldbg_skip1\ns_waitcnt vmcnt(0)")
        a.e(f"v_mov_b32 v29, {ST_OFF + 127*4*32}\nbuffer_load_dwordx4 v[32:35], v29, {srd(SW)}, 0 offen\nbuffer_load_dwordx4 v[36:39], v29, {srd(SW)}, 0 offen offset:16\ns_waitcnt vmcnt(0)")
        a.e(f"buffer_store_dwordx4 v[32:35], v30, {srd(SDBG)}, 0 offen\nbuffer_store_dwordx4 v[36:39], v30, {srd(SDBG)}, 0 offen offset:16")
    a.label("Ldbg_skip%d" % n)
def load_args(a):
    a.e("s_load_dwordx8 s[68:75], s[0:1], 0")
    a.e("s_load_dwordx4 s[76:79], s[0:1], 32")
    a.e("s_load_dwordx2 s[80:81], s[0:1], 48")
def mk_srd(a, n, p, size):
    a.e(f"s_mov_b32 s{n}, s{p}\ns_mov_b32 s{n+1}, s{p+1}\ns_mov_b32 s{n+2}, {size}\ns_mov_b32 s{n+3}, 0x20000")

XF = [32, 52]; WF = [40, 60]
ACC = 160
def acc(i, jm): return ACC + 16 * (2 * i + jm)

def p1_reads(a, s, st):
    out = []
    def rx(jm):
        d = XF[st] + 4 * jm
        return lambda: a.lds(f"ds_read_b128 {R('v',d,4)}, v{12+s} offset:{4096*jm}", regs('v', d, 4))
    def rw(i, j):
        d = WF[st] + 4 * i + 2 * j
        return lambda: a.lds(f"ds_read_b64_tr_b16 {R('v',d,2)}, v{16+i} offset:{16384+(16*s+4*j)*192}", regs('v', d, 2))
    return [rx(0), rw(0,0), rw(0,1), rx(1), rw(1,0), rw(1,1), rw(2,0), rw(2,1)]

def p1_mfma(a, st, i, jm, first=False):
    A = WF[st] + 4 * i; B = XF[st] + 4 * jm; D = acc(i, jm)
    a.need(regs('v', A, 4) | regs('v', B, 4))
    a.e(f"v_mfma_f32_32x32x16_bf16 {R('v',D,16)}, {R('v',A,4)}, {R('v',B,4)}, {'0' if first else R('v',D,16)}")

def dma_ops(a, tag):
    ops = []
    def mk(m0src, v, sr, so, off):
        def f():
            if m0src is not None:
                a.e(f"s_add_u32 m0, s42, s{m0src}\ns_nop 0")
            a.vm(f"buffer_load_dwordx4 v{v}, {srd(sr)}, s{so} offen offset:{off} lds", {tag})
        return f
    for i in range(4): ops.append(mk(43 if i == 0 else None, 2 + i, SX, 40, 1024 * i))
    for i in range(3): ops.append(mk(44 if i == 0 else None, 6 + i, SG_, 41, 1024 * i))
    for i in range(3): ops.append(mk(45 if i == 0 else None, 9 + i, SU, 41, 1024 * i))
    return ops
def dma_advance(a):
    a.e("s_add_u32 s40, s40, 128\ns_add_u32 s41, s41, 196608\ns_cmp_eq_u32 s40, 1280\ns_cselect_b32 s40, 0, s40\ns_cselect_b32 s41, 0, s41")
    a.e(f"s_add_u32 s42, s42, {STAGE}\ns_cmp_eq_u32 s42, {3*STAGE}\ns_cselect_b32 s42, 0, s42")
def rd_advance_s(a):
    a.e(f"s_add_u32 s46, s46, {STAGE}\ns_cmp_eq_u32 s46, {3*STAGE}\ns_cselect_b32 s47, {(-2*STAGE) & 0xffffffff:#x}, s49\ns_cselect_b32 s46, 0, s46")

def body(a, t_kind, dma_tag, wait_tag, extra=None):
    dm = dma_ops(a, dma_tag) if dma_tag else []
    dma_pos = {(0,4):0,(0,5):1,(1,3):2,(1,4):3,(1,5):4,(2,3):5,(2,4):6,(2,5):7,(3,2):8,(3,3):9}
    order = [(0,0),(0,1),(1,0),(1,1),(2,0),(2,1)]
    for seg in range(4):
        rd = p1_reads(a, seg, seg % 2)
        st = (seg + 1) % 2
        for g, (i, jm) in enumerate(order):
            if not (seg == 0 and t_kind == 'first'):
                p1_mfma(a, st, i, jm, first=(t_kind == 'first' and seg == 1))
            if g < 4:
                rd[2*g](); rd[2*g+1]()
            if dm and (seg, g) in dma_pos: dm[dma_pos[(seg, g)]]()
            if seg == 0 and g == 1: rd_advance_s(a)
            if seg == 3 and g == 4 and t_kind != 'last':
                for v in range(12, 16): a.e(f"v_add_u32 v{v}, s47, v{v}")
                if dm: dma_advance(a)
            if seg == 3 and g == 5 and t_kind != 'last':
                for v in range(16, 19): a.e(f"v_add_u32 v{v}, s47, v{v}")
            if extra and (seg, g) in extra: extra[(seg, g)]()
    if t_kind != 'last':
        l = a._cnt(a.vq, {wait_tag})
        a.wait(vm=len(a.vq) - l - 1, lgkm=0)
        a.e("s_barrier")

def gelu_block(a, A, T, P):
    for p in range(4): a.e(f"v_pk_mul_f32 {R('v',T+2*p,2)}, {R('v',A+2*p,2)}, {R('v',A+2*p,2)}")
    for p in range(4): a.e(f"v_pk_fma_f32 {R('v',T+2*p,2)}, {R('v',T+2*p,2)}, v[20:21], v[22:23]")
    for p in range(4): a.e(f"v_pk_mul_f32 {R('v',T+2*p,2)}, {R('v',T+2*p,2)}, {R('v',A+2*p,2)}")
    for r in range(8): a.e(f"v_exp_f32 v{T+r}, v{T+r}")
    for p in range(4): a.e(f"v_pk_add_f32 {R('v',T+2*p,2)}, {R('v',T+2*p,2)}, 1.0 op_sel_hi:[1,0]")
    for r in range(8): a.e(f"v_rcp_f32 v{T+r}, v{T+r}")
    for p in range(4): a.e(f"v_pk_mul_f32 {R('v',T+2*p,2)}, {R('v',T+2*p,2)}, {R('v',A+2*p,2)}")
    for p in range(4): a.e(f"v_pk_mul_f32 {R('v',T+2*p,2)}, {R('v',T+2*p,2)}, {R('v',A+8+2*p,2)}")
    for p in range(4): a.e(f"v_cvt_pk_bf16_f32 v{P+p}, v{T+2*p}, v{T+2*p+1}")

def kernel_a():
    a = Asm()
    a.e("s_cmp_ge_u32 s2, 256\ns_cbranch_scc1 LA_end")
    stamp(a, 0)
    load_args(a)
    a.e("v_lshrrev_b32 v20, 6, v0\nv_and_b32 v1, 63, v0")
    a.e("v_readfirstlane_b32 s36, v20")
    a.c("wg decode")
    a.e("""s_and_b32 s39, s2, 7
      s_lshr_b32 s54, s2, 3
      s_lshr_b32 s55, s54, 2
      s_and_b32 s56, s54, 3
      s_lshr_b32 s37, s39, 2
      s_lshl_b32 s37, s37, 3
      s_add_u32 s37, s37, s55
      s_and_b32 s38, s39, 3
      s_lshl_b32 s38, s38, 2
      s_add_u32 s38, s38, s56
      s_mul_i32 s57, s56, 5
      s_lshr_b32 s57, s57, 1
      s_add_u32 s57, s57, s55
      s_sub_u32 s58, s57, 10
      s_cmp_ge_u32 s57, 10
      s_cselect_b32 s57, s58, s57
      s_lshl_b32 s40, s57, 7
      s_mul_i32 s41, s57, 196608
      s_mov_b32 s42, 0
      s_lshl_b32 s43, s36, 12
      s_mul_i32 s44, s36, 3072
      s_add_u32 s45, s44, 28672
      s_add_u32 s44, s44, 16384
      s_mov_b32 s46, 0""")
    a.e(f"s_mov_b32 s49, {STAGE}")
    a.c("x DMA voffsets v2..v5")
    a.e("""s_lshl_b32 s58, s37, 7
      s_lshl_b32 s59, s36, 5
      s_add_u32 s58, s58, s59
      v_lshrrev_b32 v20, 3, v1
      v_add_u32 v20, s58, v20
      v_mul_u32_u24 v20, 1280, v20
      v_lshrrev_b32 v21, 4, v1
      v_and_b32 v22, 7, v1
      v_xor_b32 v23, v22, v21
      v_lshl_add_u32 v2, v23, 4, v20
      v_xor_b32 v23, 4, v23
      v_lshl_add_u32 v3, v23, 4, v20""")
    a.e(f"v_add_u32 v4, {2*(10240-1024)}, v2\nv_add_u32 v3, {10240-1024}, v3\nv_add_u32 v5, {2*(10240-1024)}, v3")
    a.c("g/u DMA voffsets v6..v8, v9..v11")
    a.e("s_mul_i32 s58, s36, 192\ns_mul_i32 s59, s38, 192")
    for i in range(3):
        a.e(f"""v_add_u32 v20, s58, v1
          v_add_u32 v20, {64*i}, v20
          v_mul_u32_u24 v21, 43691, v20
          v_lshrrev_b32 v21, 19, v21
          v_mul_u32_u24 v22, 12, v21
          v_sub_u32 v22, v20, v22
          v_mul_u32_u24 v21, 3072, v21
          v_add_u32 v21, s59, v21
          v_subrev_u32 v21, {1024*i}, v21
          v_lshl_add_u32 v{6+i}, v22, 4, v21
          v_xor_b32 v22, 2, v22
          v_lshl_add_u32 v{9+i}, v22, 4, v21""")
    a.e("s_waitcnt lgkmcnt(0)")
    mk_srd(a, SX, 68, 2048*640*2); mk_srd(a, SG_, 70, 640*1536*2); mk_srd(a, SU, 72, 640*1536*2)
    for f in dma_ops(a, 'T0'): f()
    dma_advance(a)
    mk_srd(a, SD, 74, 1536*640*2); mk_srd(a, SW, 80, WS_BYTES)
    a.c("raw Wd piece: 16 rows x 160 B per wave (waves 0..2), jn = wg&7, B = 3*(wg>>3)+wave")
    a.e(f"""s_mul_i32 s58, s54, 3
      s_add_u32 s58, s58, s36
      s_mul_i32 s59, s58, {16*1280}
      s_mul_i32 s60, s39, 160
      s_add_u32 s59, s59, s60
      s_cmp_eq_u32 s36, 3
      s_cselect_b32 s61, {OOB:#x}, 0
      s_add_u32 s59, s59, s61""")
    for i in range(3):
        a.e(f"""v_add_u32 v20, {64*i}, v1
          v_mul_u32_u24 v21, 6554, v20
          v_lshrrev_b32 v21, 16, v21
          v_mul_u32_u24 v22, 10, v21
          v_sub_u32 v22, v20, v22
          v_mul_u32_u24 v21, 1280, v21
          v_lshl_add_u32 v21, v22, 4, v21
          v_add_u32 v21, s59, v21
          v_subrev_u32 v{72+i}, {1024*i}, v21""")
    a.e(f"v_mov_b32 v20, {OOB:#x}\nv_cmp_gt_u32 vcc, 32, v1\ns_mul_i32 s62, s36, 3072\ns_add_u32 s62, s62, {3*STAGE}\nv_cndmask_b32 v74, v20, v74, vcc")
    a.e("s_mov_b32 m0, s62\ns_nop 0")
    for i in range(3): a.vm(f"buffer_load_dwordx4 v{72+i}, {srd(SD)}, 0 offen offset:{1024*i} lds", {'WR'})
    for f in dma_ops(a, 'T1'): f()
    dma_advance(a)
    a.c("LDS read addresses: x v12..v15, W v16..v18")
    a.e("""s_lshr_b32 s63, s36, 1
      s_and_b32 s64, s36, 1
      v_and_b32 v20, 31, v1
      v_lshrrev_b32 v21, 5, v1
      v_bfe_u32 v22, v1, 1, 3
      v_xor_b32 v22, v22, v21
      s_lshl_b32 s65, s63, 13
      v_lshlrev_b32 v23, 7, v20
      v_add_u32 v23, s65, v23""")
    for s in range(4):
        a.e(f"v_xor_b32 v24, {2*s}, v22\nv_lshl_add_u32 v{12+s}, v24, 4, v23")
    a.e("""v_bfe_u32 v20, v1, 4, 1
      v_bfe_u32 v22, v1, 2, 2
      v_lshl_add_u32 v22, v21, 3, v22
      v_mul_u32_u24 v22, 192, v22
      v_and_b32 v23, 3, v1
      v_lshl_add_u32 v22, v23, 3, v22
      v_mul_u32_u24 v23, 12288, v20
      v_add_u32 v22, v22, v23
      s_mul_i32 s65, s64, 3""")
    for i in range(3):
        a.e(f"s_add_u32 s66, s65, {i}\nv_xor_b32 v23, s66, v20\nv_lshl_add_u32 v{16+i}, v23, 5, v22")
    a.c("H store voffset v19, soffsets s52/s53")
    a.e(f"""v_bfe_u32 v20, v1, 4, 1
      v_mul_u32_u24 v20, 49152, v20
      v_lshl_add_u32 v20, v21, 8, v20
      v_and_b32 v22, 15, v1
      v_lshl_add_u32 v19, v22, 4, v20
      s_lshl_b32 s52, s37, 3
      s_lshl_b32 s66, s63, 2
      s_add_u32 s52, s52, s66
      s_mul_i32 s52, s52, 49152
      s_mul_i32 s66, s38, 6
      s_add_u32 s66, s66, s65
      s_lshl_b32 s66, s66, 9
      s_add_u32 s52, s52, s66
      s_add_u32 s53, s52, {2*49152}""")
    a.c("re-tiling: tr-read address v75, store voffsets v88/v89")
    a.e(f"""v_bfe_u32 v20, v1, 4, 1
      v_bfe_u32 v22, v1, 2, 2
      v_lshl_add_u32 v22, v20, 2, v22
      v_mul_u32_u24 v22, 160, v22
      v_lshl_add_u32 v22, v21, 5, v22
      v_and_b32 v23, 3, v1
      v_lshl_add_u32 v22, v23, 3, v22
      v_add_u32 v75, s62, v22
      s_lshr_b32 s59, s58, 1
      s_mul_i32 s59, s59, 5120
      s_and_b32 s60, s58, 1
      s_lshl_b32 s60, s60, 9
      s_add_u32 s59, s59, s60
      s_mul_i32 s60, s39, 245760
      s_add_u32 s59, s59, s60
      s_add_u32 s59, s59, s61
      s_add_u32 s59, s59, {WD_OFF}
      v_and_b32 v22, 31, v1
      v_lshlrev_b32 v22, 4, v22
      v_lshl_add_u32 v22, v21, 10, v22
      v_add_u32 v88, s59, v22
      v_add_u32 v89, 4096, v88
      v_mov_b32 v20, {OOB:#x}
      v_cndmask_b32 v89, v20, v89, vcc""")
    a.e(f"v_mov_b32 v20, {f32hex(K1)}\nv_mov_b32 v21, {f32hex(K1)}\nv_mov_b32 v22, {f32hex(K0)}\nv_mov_b32 v23, {f32hex(K0)}")
    stamp(a, 1)
    a.need({'T0', 'WR'})
    a.e("s_barrier")
    stamp(a, 2)
    if STAMPS: a.e("s_waitcnt lgkmcnt(0)")
    for o in range(3):
        for j in range(2):
            d = 76 + 4*o + 2*j
            a.lds(f"ds_read_b64_tr_b16 {R('v',d,2)}, v75 offset:{64*o+1280*j}", regs('v', d, 2))
    def wst(o):
        def f():
            d = 76 + 4*o
            a.need(regs('v', d, 4))
            a.vm(f"buffer_store_dwordx4 {R('v',d,4)}, v{88 if o < 2 else 89}, {srd(SW)}, 0 offen offset:{2048*o if o < 2 else 0}", {'WS'})
        return f
    body(a, 'first', 'T2', 'T1', extra={(0,1): wst(0), (0,2): wst(1), (0,3): wst(2)})
    a.e("s_mov_b32 s48, 7")
    a.label("LA_loop")
    a.vq = [{'P'}] * 10
    body(a, 'mid', 'N', 'P')
    a.e("s_sub_u32 s48, s48, 1\ns_cmp_lg_u32 s48, 0\ns_cbranch_scc1 LA_loop")
    stamp(a, 3)
    if STAMPS: a.e("s_waitcnt lgkmcnt(0)")
    a.vq = [{'P'}] * 10
    body(a, 'mid', None, 'P')
    body(a, 'last', None, None)
    for (i, jm) in [(0,0),(0,1),(1,0),(1,1),(2,0),(2,1)]:
        p1_mfma(a, 1, i, jm)
    a.e("s_nop 7")
    stamp(a, 4)
    n = 0
    for i in range(3):
        for jm in range(2):
            T = 32 + 8 * (n % 2); P = 48 + 4 * (n % 4); n += 1
            gelu_block(a, acc(i, jm), T, P)
            a.vm(f"buffer_store_dwordx4 {R('v',P,4)}, v19, {srd(SW)}, s{52+jm} offen offset:{512*i}")
    stamp(a, 5)
    dump_stamps(a, 7, 0)
    if STAMPS: dump_dbg(a, 0)
    a.label("LA_end")
    a.e("s_endpgm")
    return a.text()

HR = 32; ACC2 = [96, 116]; PART = 136
def kernel_b():
    a = Asm()
    a.e("s_cmp_ge_u32 s2, 256\ns_cbranch_scc1 LB_end")
    stamp(a, 0)
    load_args(a)
    a.e("v_lshrrev_b32 v20, 6, v0\nv_and_b32 v1, 63, v0")
    a.e("v_readfirstlane_b32 s36, v20")
    a.c("m64 = s37, jn = s38, rho = s39, rho2 = s40")
    a.e(f"""s_and_b32 s39, s2, 7
      s_lshr_b32 s54, s2, 3
      s_lshr_b32 s37, s54, 3
      s_lshl_b32 s39, s39, 2
      s_add_u32 s37, s37, s39
      s_and_b32 s38, s54, 7
      s_and_b32 s39, s38, 3
      s_lshr_b32 s40, s38, 2
      s_lshl_b32 s40, s40, 1
      s_add_u32 s40, s40, s37
      s_mul_i32 s41, s36, 12
      s_mul_i32 s42, s38, 245760
      s_add_u32 s42, s42, {WD_OFF}""")
    for g in range(4):
        a.e(f"s_add_u32 s43, s40, {g}\ns_and_b32 s43, s43, 3\ns_mul_i32 s43, s43, 3\ns_add_u32 s43, s43, s41\ns_lshl_b32 s{44+g}, s43, 10\ns_mul_i32 s43, s43, 5120\ns_add_u32 s{48+g}, s43, s42")
    for q in range(4):
        a.e(f"s_add_u32 s43, s36, {q+1}\ns_and_b32 s43, s43, 3")
        if q < 3: a.e(f"s_mul_i32 s{56+q}, s43, 15360\ns_add_u32 s{56+q}, s{56+q}, {5120*q}")
        a.e(f"s_add_u32 s43, s43, s39\ns_and_b32 s43, s43, 3\ns_lshl_b32 s60, s37, 2\ns_add_u32 s60, s60, s43\ns_mul_i32 s{52+q}, s60, 49152")
    a.c("s60 = own m16 block")
    a.e("v_lshlrev_b32 v2, 4, v1\nv_add_u32 v3, 4096, v2\nv_add_u32 v4, 8192, v2\nv_add_u32 v5, 12288, v2")
    a.e("s_waitcnt lgkmcnt(0)")
    mk_srd(a, SW, 80, WS_BYTES); mk_srd(a, SO, 76, 2048*640*2)
    loads = []
    def lw(s, b):
        g, idx = s // 3, (s % 3) * 5 + b
        d = (s * 5 + b) * 4
        return lambda: a.vm(f"buffer_load_dwordx4 {R('a',d,4)}, v{2+idx//4}, {srd(SW)}, s{48+g} offen offset:{1024*(idx%4)}", regs('a', d, 4))
    def lh(n):
        q, s = n // 12, n % 12
        d = HR + 4 * (n % 16)
        def f():
            if s % 3 == 0: a.e(f"s_add_u32 s61, s{52+q}, s{44+s//3}")
            a.vm(f"buffer_load_dwordx4 {R('v',d,4)}, v2, {srd(SW)}, s61 offen offset:{1024*(s%3)}", regs('v', d, 4))
        return f
    hidx = {}
    for s in range(12):
        for b in range(5): loads.append(lw(s, b))
        hidx[s] = len(loads); loads.append(lh(s))
    for n in range(12, 48):
        hidx[n] = len(loads); loads.append(lh(n))
    pos = 0
    AHEAD = 12
    while pos <= hidx[0] + AHEAD: loads[pos](); pos += 1
    a.c("LDS addresses")
    a.e("""v_add_u32 v6, s56, v2
      v_add_u32 v7, s57, v2
      v_add_u32 v8, s58, v2
      s_mul_i32 s62, s36, 15360
      v_add_u32 v9, s62, v2
      s_mul_i32 s62, s36, 2816
      s_add_u32 s62, s62, 61440
      v_and_b32 v20, 15, v1
      v_mul_u32_u24 v20, 176, v20
      v_lshrrev_b32 v21, 4, v1
      v_lshl_add_u32 v20, v21, 3, v20
      v_add_u32 v10, s62, v20
      s_mul_i32 s63, s60, 20480
      s_mul_i32 s64, s38, 160
      s_add_u32 s63, s63, s64""")
    for i in range(3):
        a.e(f"""v_add_u32 v20, {64*i}, v1
          v_mul_u32_u24 v21, 6554, v20
          v_lshrrev_b32 v21, 16, v21
          v_mul_u32_u24 v22, 10, v21
          v_sub_u32 v22, v20, v22
          v_mul_u32_u24 v23, 176, v21
          v_lshl_add_u32 v23, v22, 4, v23
          v_add_u32 v{11+i}, s62, v23
          v_mul_u32_u24 v21, 1280, v21
          v_lshl_add_u32 v21, v22, 4, v21
          v_add_u32 v{14+i}, s63, v21""")
    a.e(f"v_mov_b32 v20, {OOB:#x}\nv_cmp_gt_u32 vcc, 32, v1\nv_mov_b32 v21, s62\ns_nop 0\nv_cndmask_b32 v16, v20, v16, vcc\nv_cndmask_b32 v13, v21, v13, vcc")
    for n in range(48):
        q, s = n // 12, n % 12
        if s == 1:
            stamp(a, 1 + q)
            if STAMPS: a.e("s_waitcnt lgkmcnt(0)"); a.lq = []
        C = ACC2[q % 2]; Pv = ACC2[(q + 1) % 2]
        for b in range(5):
            A = (s * 5 + b) * 4; B = HR + 4 * (n % 16)
            a.need(regs('a', A, 4) | regs('v', B, 4))
            a.e(f"v_mfma_f32_16x16x32_bf16 {R('v',C+4*b,4)}, {R('a',A,4)}, {R('v',B,4)}, {'0' if s == 0 else R('v',C+4*b,4)}")
            nxt = hidx[n + 1] + AHEAD if n + 1 < 48 else len(loads)
            rem = min(nxt + 1, len(loads)) - pos
            k = -(-rem // (5 - b)) if rem > 0 else 0
            for _ in range(k): loads[pos](); pos += 1
            if q > 0 and s == 2:
                a.lds(f"ds_write_b128 v{6+q-1}, {R('v',Pv+4*b,4)} offset:{1024*b}", {'PW'})
            if q == 3 and s == 4 and b == 4:
                a.need({'PW'}); a.e("s_barrier")
            if q == 3 and s in (5, 6, 7):
                d = PART + 20 * (s - 5) + 4 * b
                a.lds(f"ds_read_b128 {R('v',d,4)}, v9 offset:{5120*(s-5)+1024*b}", regs('v', d, 4))
            if q == 3 and s in (9, 10):
                d0 = PART + 4 * b; d1 = PART + 20 * (s - 8) + 4 * b
                a.need(regs('v', d0, 4) | regs('v', d1, 4))
                for h in range(2): a.e(f"v_pk_add_f32 {R('v',d0+2*h,2)}, {R('v',d0+2*h,2)}, {R('v',d1+2*h,2)}")
    C = ACC2[1]
    a.e("s_nop 3")
    for b in range(5):
        for h in range(2): a.e(f"v_pk_add_f32 {R('v',PART+4*b+2*h,2)}, {R('v',PART+4*b+2*h,2)}, {R('v',C+4*b+2*h,2)}")
    for b in range(5):
        for h in range(2): a.e(f"v_cvt_pk_bf16_f32 v{200+2*b+h}, v{PART+4*b+2*h}, v{PART+4*b+2*h+1}")
        a.lds(f"ds_write_b64 v10, {R('v',200+2*b,2)} offset:{32*b}", {'OW'})
    a.need({'OW'})
    for i in range(3): a.lds(f"ds_read_b128 {R('v',212+4*i,4)}, v{11+i}", regs('v', 212+4*i, 4))
    for i in range(3):
        a.need(regs('v', 212+4*i, 4))
        a.vm(f"buffer_store_dwordx4 {R('v',212+4*i,4)}, v{14+i}, {srd(SO)}, 0 offen")
    stamp(a, 5)
    dump_stamps(a, 7, 1)
    if STAMPS: dump_dbg(a, 1)
    a.label("LB_end")
    a.e("s_endpgm")
    return a.text()

def kd(name, vgpr, acc_off):
    return f""".p2align 6
.amdhsa_kernel {name}
  .amdhsa_next_free_vgpr {vgpr}
  .amdhsa_next_free_sgpr 102
  .amdhsa_accum_offset {acc_off}
  .amdhsa_group_segment_fixed_size 0
  .amdhsa_kernarg_size 56
  .amdhsa_user_sgpr_count 2
  .amdhsa_user_sgpr_kernarg_segment_ptr 1
  .amdhsa_system_sgpr_workgroup_id_x 1
  .amdhsa_float_denorm_mode_32 3
.end_amdhsa_kernel
"""
def head(name): return f".globl {name}\n.p2align 8\n.type {name},@function\n{name}:\n"

if __name__ == "__main__":
    STAMPS = len(sys.argv) > 2 and sys.argv[2] == "st"
    out = f"""; GEGLU MLP: out = (gelu_tanh(x Wg) * (x Wu)) Wd ; x[2048,640] Wg,Wu[640,1536] Wd[1536,640] bf16
; @launch kernel=geglu_a_kernel grid=(256,1,1) block=(256,1,1) lds={3*STAGE+4*3072}
; @launch kernel=geglu_b_kernel grid=(256,1,1) block=(256,1,1) lds={61440+4*2816}
.amdgcn_target "amdgcn-amd-amdhsa--gfx950"
.text
""" + head("geglu_a_kernel") + kernel_a() + head("geglu_b_kernel") + kernel_b() + '.section .rodata,"a"\n' + kd("geglu_a_kernel", 256, 256) + kd("geglu_b_kernel", 512, 256)
    open(sys.argv[1] if len(sys.argv) > 1 else f"cdna_kernels/{NAME}.s", "w").write(out)
```

```python
import math, sys, os
from asmlib import *

NAME = "standalone__glu_gated_geglu__prompt"
H_OFF, WD_OFF, FW_OFF, FH_OFF, ST_OFF, WS_BYTES = 0, 0x600000, 0x7E0000, 0x7F0000, 0x800000, 0x900000
OOB = 0x40000000
STAGE = 40960
K0 = -2.0 * math.log2(math.e) * math.sqrt(2.0 / math.pi)
K1 = K0 * 0.044715
SX, SG_, SU, SD, SW, SO, SDBG = 8, 12, 16, 20, 24, 28, 32
def srd(n): return f"s[{n}:{n+3}]"

class Cfg:
    stamps = False
    rot = "none"
    npre = 35
    ahead = 12
    spin = 100000
    poll1 = 1
    gapper = 3
    rho = 1
    rho2 = 1
    p2map = 0
    ftmap = 1
    unroll = 0
    fine = 0
    nosync = 0
    p1only = 0
    nodma = 0
    contig = 0
    vpos = 0
    rdpat = 0
    nord = 0
cfg = Cfg()

STV = 136
def stamp(a, i):
    if cfg.stamps:
        a.e(f"s_memrealtime s[84:85]\ns_memtime s[86:87]\ns_waitcnt lgkmcnt(0)\nv_mov_b32 v{STV+2*i}, s84\nv_mov_b32 v{STV+1+2*i}, s86")
        a.lq = []
def dump_stamps(a, n):
    if not cfg.stamps: return
    a.e("s_waitcnt vmcnt(0)")
    stamp(a, n - 1)
    a.e(f"s_lshl_b32 s82, s2, 2\ns_add_u32 s82, s82, s36\ns_lshl_b32 s82, s82, 7\ns_add_u32 s82, s82, {ST_OFF}\nv_mov_b32 v30, s82\ns_mov_b64 exec, 1")
    for i in range(0, 2 * n, 2):
        a.e(f"buffer_store_dwordx2 v[{STV+i}:{STV+i+1}], v30, {srd(SW)}, 0 offen offset:{4*i}")

def mk_srd(a, n, p, size):
    a.e(f"s_mov_b32 s{n}, s{p}\ns_mov_b32 s{n+1}, s{p+1}\ns_mov_b32 s{n+2}, {size}\ns_mov_b32 s{n+3}, 0x20000")

XF = [32, 52]; WF = [40, 60]
ACC = 160
def acc(i, jm): return ACC + 16 * (2 * i + jm)

def p1_reads(a, s, st):
    def rx(jm):
        d = XF[st] + 4 * jm
        return lambda: a.lds(f"ds_read_b128 {R('v',d,4)}, v{12+s} offset:{4096*jm}", regs('v', d, 4))
    def rw(i, j):
        d = WF[st] + 4 * i + 2 * j
        return lambda: a.lds(f"ds_read_b64_tr_b16 {R('v',d,2)}, v{16+i} offset:{16384+(16*s+4*j)*192}", regs('v', d, 2))
    return [rx(0), rw(0,0), rw(0,1), rx(1), rw(1,0), rw(1,1), rw(2,0), rw(2,1)]

def p1_mfma(a, st, i, jm, first=False):
    A = WF[st] + 4 * i; B = XF[st] + 4 * jm; D = acc(i, jm)
    a.need(regs('v', A, 4) | regs('v', B, 4))
    a.e(f"v_mfma_f32_32x32x16_bf16 {R('v',D,16)}, {R('v',A,4)}, {R('v',B,4)}, {'0' if first else R('v',D,16)}")

def dma_ops(a, tag):
    ops = []
    def mk(m0src, v, sr, so, off):
        def f():
            if m0src is not None:
                a.e(f"s_add_u32 m0, s42, s{m0src}\ns_nop 0")
            if cfg.nodma and tag == 'N': a.vq.append({tag}); return
            a.vm(f"buffer_load_dwordx4 v{v}, {srd(sr)}, s{so} offen offset:{off} lds", {tag})
        return f
    for i in range(4): ops.append(mk(43 if i == 0 else None, 2 + i, SX, 40, 1024 * i))
    for i in range(3): ops.append(mk(44 if i == 0 else None, 6 + i, SG_, 41, 1024 * i))
    for i in range(3): ops.append(mk(45 if i == 0 else None, 9 + i, SU, 41, 1024 * i))
    return ops
def dma_advance(a):
    a.e("s_add_u32 s40, s40, 128\ns_add_u32 s41, s41, 196608\ns_cmp_eq_u32 s40, 1280\ns_cselect_b32 s40, 0, s40\ns_cselect_b32 s41, 0, s41")
    a.e(f"s_add_u32 s42, s42, {STAGE}\ns_cmp_eq_u32 s42, {3*STAGE}\ns_cselect_b32 s42, 0, s42")
def rd_advance_s(a):
    a.e(f"s_add_u32 s46, s46, {STAGE}\ns_cmp_eq_u32 s46, {3*STAGE}\ns_cselect_b32 s47, {(-2*STAGE) & 0xffffffff:#x}, s49\ns_cselect_b32 s46, 0, s46")

VPOSS = [[(0,4),(0,5),(1,3),(1,4),(1,5),(2,3),(2,4),(2,5),(3,2),(3,3)],
         [(0,1),(0,3),(0,5),(1,2),(1,4),(2,0),(2,2),(2,5),(3,1),(3,3)],
         [(0,4),(0,5),(0,5),(1,4),(1,5),(1,5),(2,4),(2,5),(3,4),(3,4)],
         [(0,1),(0,4),(1,1),(1,2),(1,4),(2,1),(2,2),(2,4),(3,1),(3,2)]]
RDPAT = [[2,2,2,2,0,0],[3,3,2,0,0,0],[2,1,1,2,1,1],[4,4,0,0,0,0],[2,0,0,2,2,2]]
ORDER = [(0,0),(0,1),(1,0),(1,1),(2,0),(2,1)]
def body(a, t_kind, vmops, is_dma, wait_tag, extra=None):
    pos = {}
    if vmops:
        P = VPOSS[cfg.vpos] if len(vmops) <= 10 else [(s, g) for s in range(4) for g in range(6)][24 - len(vmops):] if len(vmops) <= 24 else None
        if not is_dma:
            allp = [(s, g) for s in range(4) for g in range(6)]
            lo = 24 - min(24, int(len(vmops) * cfg.gapper))
            P = [allp[lo + (k * (24 - lo)) // len(vmops)] for k in range(len(vmops))]
        for k, f in enumerate(vmops): pos.setdefault(P[k], []).append(f)
    for seg in range(4):
        rd = p1_reads(a, seg, seg % 2)
        st = (seg + 1) % 2
        for g, (i, jm) in enumerate(ORDER):
            if not (seg == 0 and t_kind == 'first'):
                p1_mfma(a, st, i, jm, first=(t_kind == 'first' and seg == 1))
            pat = RDPAT[cfg.rdpat]
            for k in range(sum(pat[:g]), sum(pat[:g+1])):
                if cfg.nord and t_kind == 'mid': continue
                rd[k]()
            if extra and (seg, g) in extra: extra[(seg, g)]()
            for f in pos.get((seg, g), []): f()
            if seg == 0 and g == 1 and t_kind != 'last': rd_advance_s(a)
            if seg == 3 and g == 3 and t_kind != 'last':
                for v in range(12, 15): a.e(f"v_add_u32 v{v}, s47, v{v}")
            if seg == 3 and g == 4 and t_kind != 'last':
                if is_dma: dma_advance(a)
            if seg == 3 and g == 5 and t_kind != 'last':
                for v in range(15, 19): a.e(f"v_add_u32 v{v}, s47, v{v}")
    if t_kind != 'last':
        l = a._cnt(a.vq, wait_tag)
        a.wait(vm=len(a.vq) - l - 1, lgkm=0)
        a.e("s_barrier")

def gelu_block(a, A, T, P, gaps):
    gaps = list(gaps)
    def gap():
        if gaps: gaps.pop(0)()
    for p in range(4): a.e(f"v_pk_mul_f32 {R('v',T+2*p,2)}, {R('v',A+2*p,2)}, {R('v',A+2*p,2)}")
    for p in range(4): a.e(f"v_pk_fma_f32 {R('v',T+2*p,2)}, {R('v',T+2*p,2)}, v[20:21], v[22:23]")
    gap()
    for p in range(4): a.e(f"v_pk_mul_f32 {R('v',T+2*p,2)}, {R('v',T+2*p,2)}, {R('v',A+2*p,2)}")
    for r in range(8): a.e(f"v_exp_f32 v{T+r}, v{T+r}")
    gap()
    for p in range(4): a.e(f"v_pk_add_f32 {R('v',T+2*p,2)}, {R('v',T+2*p,2)}, 1.0 op_sel_hi:[1,0]")
    for r in range(8): a.e(f"v_rcp_f32 v{T+r}, v{T+r}")
    gap()
    for p in range(4): a.e(f"v_pk_mul_f32 {R('v',T+2*p,2)}, {R('v',T+2*p,2)}, {R('v',A+2*p,2)}")
    for p in range(4): a.e(f"v_pk_mul_f32 {R('v',T+2*p,2)}, {R('v',T+2*p,2)}, {R('v',A+8+2*p,2)}")
    while gaps: gap()
    for p in range(4): a.e(f"v_cvt_pk_bf16_f32 v{P+p}, v{T+2*p}, v{T+2*p+1}")

def spin_until(a, lab, voff, sr, data, cmp):
    a.e(cmp)
    a.e(f"s_mov_b32 s83, {cfg.spin}\ns_cbranch_vccz {lab}_ok")
    a.label(f"{lab}_spin")
    a.e(f"buffer_load_dwordx2 {data}, {voff}, {srd(sr)}, 0 offen sc1\ns_waitcnt vmcnt(0)")
    a.e(cmp)
    a.e(f"s_sub_u32 s83, s83, 1\ns_cbranch_vccz {lab}_ok\ns_cmp_lg_u32 s83, 0\ns_cbranch_scc1 {lab}_spin")
    a.label(f"{lab}_ok")

P2L = STAGE
HR = 32; ACC2 = [96, 116]; PART = 160

def kernel():
    a = Asm()
    a.e("s_cmp_ge_u32 s2, 256\ns_cbranch_scc1 L_end")
    a.e("s_load_dwordx8 s[68:75], s[0:1], 0\ns_load_dwordx4 s[76:79], s[0:1], 32\ns_load_dwordx2 s[80:81], s[0:1], 48")
    stamp(a, 0)
    a.e("v_lshrrev_b32 v20, 6, v0\nv_and_b32 v1, 63, v0")
    a.e("v_readfirstlane_b32 s36, v20")
    a.c("decode: s39 xcd, s54 idx, s37 m-tile, s38 f-tile, s57 first k-tile")
    a.e("""s_and_b32 s39, s2, 7
      s_lshr_b32 s54, s2, 3
      s_lshr_b32 s55, s54, 2
      s_and_b32 s56, s54, 3
      s_lshr_b32 s37, s39, 2
      s_lshl_b32 s37, s37, 3
      s_add_u32 s37, s37, s55
      s_and_b32 s38, s39, 3""")
    if cfg.ftmap: a.e("s_lshl_b32 s58, s56, 2\ns_add_u32 s38, s38, s58")
    else: a.e("s_lshl_b32 s38, s38, 2\ns_add_u32 s38, s38, s56")
    if cfg.rot == "full":
        a.e("s_mul_i32 s57, s56, 5\ns_lshr_b32 s57, s57, 1\ns_add_u32 s57, s57, s55\ns_sub_u32 s58, s57, 10\ns_cmp_ge_u32 s57, 10\ns_cselect_b32 s57, s58, s57")
    elif cfg.rot == "two":
        a.e("s_xor_b32 s57, s55, s56\ns_and_b32 s57, s57, 1\ns_mul_i32 s57, s57, 5")
    elif cfg.rot == "xcd":
        a.e("s_mov_b32 s57, s39")
    else:
        a.e("s_mov_b32 s57, 0")
    a.e(f"""s_lshl_b32 s40, s57, 7
      s_mul_i32 s41, s57, 196608
      s_mov_b32 s42, 0
      s_lshl_b32 s43, s36, 12
      s_mul_i32 s44, s36, 3072
      s_add_u32 s45, s44, 28672
      s_add_u32 s44, s44, 16384
      s_mov_b32 s46, 0
      s_mov_b32 s49, {STAGE}""")
    a.c("x DMA voffsets v2..v5")
    a.e("""s_lshl_b32 s58, s37, 7
      s_lshl_b32 s59, s36, 5
      s_add_u32 s58, s58, s59
      v_lshrrev_b32 v20, 3, v1
      v_add_u32 v20, s58, v20
      v_mul_u32_u24 v20, 1280, v20
      v_lshrrev_b32 v21, 4, v1
      v_and_b32 v22, 7, v1
      v_xor_b32 v23, v22, v21
      v_lshl_add_u32 v2, v23, 4, v20
      v_xor_b32 v23, 4, v23
      v_lshl_add_u32 v3, v23, 4, v20""")
    a.e(f"v_add_u32 v4, {2*(10240-1024)}, v2\nv_add_u32 v3, {10240-1024}, v3\nv_add_u32 v5, {2*(10240-1024)}, v3")
    a.c("g/u DMA voffsets v6..v8, v9..v11")
    a.e("s_mul_i32 s58, s36, 192\ns_mul_i32 s59, s38, 192")
    for i in range(3):
        a.e(f"v_add_u32 v20, s58, v1")
        if i: a.e(f"v_add_u32 v20, {64*i}, v20")
        a.e(f"""v_mul_u32_u24 v21, 43691, v20
          v_lshrrev_b32 v21, 19, v21
          v_mul_u32_u24 v22, 12, v21
          v_sub_u32 v22, v20, v22
          v_mul_u32_u24 v21, 3072, v21
          v_add_u32 v21, s59, v21""")
        if i: a.e(f"v_subrev_u32 v21, {1024*i}, v21")
        a.e(f"v_lshl_add_u32 v{6+i}, v22, 4, v21\nv_xor_b32 v22, 2, v22\nv_lshl_add_u32 v{9+i}, v22, 4, v21")
    if cfg.contig:
        a.e("s_mul_i32 s58, s36, 3072\ns_mul_i32 s59, s38, 12288\ns_add_u32 s58, s58, s59\nv_lshlrev_b32 v20, 4, v1\nv_add_u32 v6, s58, v20")
        for v in range(7, 12): a.e(f"v_mov_b32 v{v}, v6")
    a.e("s_waitcnt lgkmcnt(0)")
    mk_srd(a, SX, 68, 2048*640*2); mk_srd(a, SG_, 70, 640*1536*2); mk_srd(a, SU, 72, 640*1536*2)
    mk_srd(a, SDBG, 78, 256)
    a.c("launch tag: workgroup 0 / wave 3 publishes the real-time counter in d_debug")
    a.e("s_lshl_b32 s58, s2, 2\ns_add_u32 s58, s58, s36\nv_mov_b32 v30, 0\ns_cmp_lg_u32 s58, 3\ns_cbranch_scc1 L_notag")
    a.e(f"s_memrealtime s[58:59]\ns_waitcnt lgkmcnt(0)\ns_or_b32 s59, s59, 0x80000000\nv_mov_b32 v24, s58\nv_mov_b32 v25, s59\nbuffer_store_dwordx2 v[24:25], v30, {srd(SDBG)}, 0 offen sc1")
    a.label("L_notag")
    for f in dma_ops(a, 'T0'): f()
    dma_advance(a)
    mk_srd(a, SD, 74, 1536*640*2); mk_srd(a, SW, 80, WS_BYTES)
    a.c("raw Wd piece: 16 rows x 160 B per wave (waves 0..2), jn = wg&7, B = 3*(wg>>3)+wave")
    a.e(f"""s_mul_i32 s58, s54, 3
      s_add_u32 s58, s58, s36
      s_mul_i32 s59, s58, {16*1280}
      s_mul_i32 s60, s39, 160
      s_add_u32 s59, s59, s60
      s_cmp_eq_u32 s36, 3
      s_cselect_b32 s61, {OOB:#x}, 0
      s_add_u32 s59, s59, s61""")
    for i in range(3):
        a.e(f"""v_add_u32 v20, {64*i}, v1
          v_mul_u32_u24 v21, 6554, v20
          v_lshrrev_b32 v21, 16, v21
          v_mul_u32_u24 v22, 10, v21
          v_sub_u32 v22, v20, v22
          v_mul_u32_u24 v21, 1280, v21
          v_lshl_add_u32 v21, v22, 4, v21
          v_add_u32 v21, s59, v21
          v_subrev_u32 v{72+i}, {1024*i}, v21""")
    a.e(f"v_mov_b32 v20, {OOB:#x}\nv_cmp_gt_u32 vcc, 32, v1\ns_mul_i32 s62, s36, 3072\ns_add_u32 s62, s62, {3*STAGE}\nv_cndmask_b32 v74, v20, v74, vcc")
    a.e("s_mov_b32 m0, s62\ns_nop 0")
    for i in range(3): a.vm(f"buffer_load_dwordx4 v{72+i}, {srd(SD)}, 0 offen offset:{1024*i} lds", {'WR'})
    a.c("LDS read addresses: x v12..v15, W v16..v18")
    a.e("""s_lshr_b32 s63, s36, 1
      s_and_b32 s64, s36, 1
      v_and_b32 v20, 31, v1
      v_lshrrev_b32 v21, 5, v1
      v_bfe_u32 v22, v1, 1, 3
      v_xor_b32 v22, v22, v21
      s_lshl_b32 s65, s63, 13
      v_lshlrev_b32 v23, 7, v20
      v_add_u32 v23, s65, v23""")
    for s in range(4):
        a.e(f"v_xor_b32 v31, {2*s}, v22\nv_lshl_add_u32 v{12+s}, v31, 4, v23")
    a.e("""v_bfe_u32 v20, v1, 4, 1
      v_bfe_u32 v22, v1, 2, 2
      v_lshl_add_u32 v22, v21, 3, v22
      v_mul_u32_u24 v22, 192, v22
      v_and_b32 v23, 3, v1
      v_lshl_add_u32 v22, v23, 3, v22
      v_mul_u32_u24 v23, 12288, v20
      v_add_u32 v22, v22, v23
      s_mul_i32 s65, s64, 3""")
    for i in range(3):
        a.e(f"s_add_u32 s66, s65, {i}\nv_xor_b32 v23, s66, v20\nv_lshl_add_u32 v{16+i}, v23, 5, v22")
    a.c("H store voffset v19, soffsets s52/s53 ; H flag store offset v94")
    a.e(f"""v_bfe_u32 v20, v1, 4, 1
      v_mul_u32_u24 v20, 49152, v20
      v_lshl_add_u32 v20, v21, 8, v20
      v_and_b32 v22, 15, v1
      v_lshl_add_u32 v19, v22, 4, v20
      s_lshl_b32 s52, s37, 3
      s_lshl_b32 s66, s63, 2
      s_add_u32 s52, s52, s66
      s_mul_i32 s52, s52, 49152
      s_mul_i32 s66, s38, 6
      s_add_u32 s66, s66, s65
      s_lshl_b32 s66, s66, 9
      s_add_u32 s52, s52, s66
      s_add_u32 s53, s52, {2*49152}
      s_lshl_b32 s66, s37, 1
      s_add_u32 s66, s66, s63
      s_lshl_b32 s66, s66, 4
      s_add_u32 s66, s66, s38
      s_lshl_b32 s66, s66, 1
      s_add_u32 s66, s66, s64
      s_lshl_b32 s66, s66, 3
      s_add_u32 s66, s66, {FH_OFF}
      v_mov_b32 v94, s66""")
    a.c("re-tiling: tr-read address v75, store voffsets v88/v89, flag store offset v29")
    a.e(f"""v_bfe_u32 v20, v1, 4, 1
      v_bfe_u32 v22, v1, 2, 2
      v_lshl_add_u32 v22, v20, 2, v22
      v_mul_u32_u24 v22, 160, v22
      v_lshl_add_u32 v22, v21, 5, v22
      v_and_b32 v23, 3, v1
      v_lshl_add_u32 v22, v23, 3, v22
      v_add_u32 v75, s62, v22
      s_lshr_b32 s59, s58, 1
      s_mul_i32 s59, s59, 5120
      s_and_b32 s60, s58, 1
      s_lshl_b32 s60, s60, 9
      s_add_u32 s59, s59, s60
      s_mul_i32 s60, s39, 245760
      s_add_u32 s59, s59, s60
      s_add_u32 s59, s59, s61
      s_add_u32 s59, s59, {WD_OFF}
      v_and_b32 v22, 31, v1
      v_lshlrev_b32 v22, 4, v22
      v_lshl_add_u32 v22, v21, 10, v22
      v_add_u32 v88, s59, v22
      v_add_u32 v89, 4096, v88
      v_mov_b32 v20, {OOB:#x}
      v_cndmask_b32 v89, v20, v89, vcc
      s_mul_i32 s60, s39, 96
      s_add_u32 s60, s60, s58
      s_lshl_b32 s60, s60, 3
      s_add_u32 s60, s60, s61
      s_add_u32 s60, s60, {FW_OFF}
      v_mov_b32 v29, s60""")
    a.c("phase-2 roles: s88 m64, s89 jn, s90 rho, s91 rho2 ; s92-95 k-step*1024 ; s96-99 Wd' soffsets")
    if cfg.p2map == 0:
        a.e("s_lshr_b32 s88, s54, 3\ns_lshl_b32 s58, s39, 2\ns_add_u32 s88, s88, s58\ns_and_b32 s89, s54, 7")
    else:
        a.e("s_lshr_b32 s88, s54, 2\ns_lshr_b32 s58, s39, 1\ns_lshl_b32 s58, s58, 3\ns_add_u32 s88, s88, s58\ns_and_b32 s89, s54, 3\ns_and_b32 s58, s39, 1\ns_lshl_b32 s58, s58, 2\ns_add_u32 s89, s89, s58")
    a.e({0: "s_mov_b32 s90, 0", 1: "s_and_b32 s90, s89, 3", 2: "s_and_b32 s90, s89, 1\ns_lshl_b32 s90, s90, 1"}[cfg.rho])
    a.e({0: "s_mov_b32 s91, 0", 1: "s_lshr_b32 s91, s89, 2\ns_lshl_b32 s91, s91, 1\ns_add_u32 s91, s91, s88",
         2: "s_and_b32 s91, s88, 1\ns_lshl_b32 s91, s91, 1", 3: "s_mov_b32 s91, s39"}[cfg.rho2])
    a.e(f"""      s_mul_i32 s58, s36, 12
      s_mul_i32 s59, s89, 245760
      s_add_u32 s59, s59, {WD_OFF}""")
    for g in range(4):
        a.e(f"s_add_u32 s60, s91, {g}\ns_and_b32 s60, s60, 3\ns_mul_i32 s60, s60, 3\ns_add_u32 s60, s60, s58\ns_lshl_b32 s{92+g}, s60, 10\ns_mul_i32 s60, s60, 5120\ns_add_u32 s{96+g}, s60, s59")
    a.e(f"""v_lshlrev_b32 v90, 4, v1
      v_add_u32 v91, 4096, v90
      v_add_u32 v92, 8192, v90
      v_add_u32 v93, 12288, v90
      s_mul_i32 s60, s89, 96
      s_mul_i32 s61, s36, 24
      s_add_u32 s60, s60, s61
      s_lshl_b32 s60, s60, 3
      s_add_u32 s60, s60, {FW_OFF}
      v_min_u32 v20, 23, v1
      v_lshlrev_b32 v20, 3, v20
      v_add_u32 v28, s60, v20
      s_lshl_b32 s60, s88, 2
      s_add_u32 s60, s60, s36
      s_lshl_b32 s60, s60, 6
      s_add_u32 s60, s60, {FH_OFF}
      v_and_b32 v20, 7, v1
      v_lshlrev_b32 v20, 3, v20
      v_add_u32 v95, s60, v20""")
    a.e(f"v_mov_b32 v20, {f32hex(K1)}\nv_mov_b32 v21, {f32hex(K1)}\nv_mov_b32 v22, {f32hex(K0)}\nv_mov_b32 v23, {f32hex(K0)}")
    for f in dma_ops(a, 'T1'): f()
    dma_advance(a)
    stamp(a, 1)
    a.need({'T0', 'WR'})
    a.e("s_barrier")
    stamp(a, 2)
    for o in range(3):
        for j in range(2):
            d = 76 + 4*o + 2*j
            a.lds(f"ds_read_b64_tr_b16 {R('v',d,2)}, v75 offset:{64*o+1280*j}", regs('v', d, 2))
    def wst(o):
        def f():
            d = 76 + 4*o
            a.need(regs('v', d, 4))
            a.vm(f"buffer_store_dwordx4 {R('v',d,4)}, v{88 if o < 2 else 89}, {srd(SW)}, 0 offen offset:{2048*o if o < 2 else 0}{'' if cfg.nosync else ' sc1'}", {'WS'})
        return f
    def ldtag():
        if not cfg.nosync: a.vm(f"buffer_load_dwordx2 v[24:25], v30, {srd(SDBG)}, 0 offen sc1", {'TAG'})
    body(a, 'first', dma_ops(a, 'T2'), True, {'T1', 'TAG'}, extra={(0,0): ldtag, (0,1): wst(0), (0,2): wst(1), (0,3): wst(2)})
    if not cfg.nosync: spin_until(a, "L_tag", "v30", SDBG, "v[24:25]", "v_cmp_eq_u32 vcc, 0, v25\ns_nop 1")
    def flag_w():
        if not cfg.nosync: a.vm(f"buffer_store_dwordx2 v[24:25], v29, {srd(SW)}, 0 offen sc1", {'P'})
    def poll_w():
        if not cfg.nosync: a.vm(f"buffer_load_dwordx2 v[26:27], v28, {srd(SW)}, 0 offen sc1", {'P'})
    if cfg.fine or cfg.unroll:
        if cfg.fine: a.e("s_memtime s[68:69]")
        for t in range(1, 8):
            a.vq = [{'P'}] * 10
            body(a, 'mid', dma_ops(a, 'N'), True, {'P'}, extra={(0,0): flag_w} if t == 2 else {(0,0): poll_w} if t == 7 else None)
            if cfg.fine: a.e(f"s_memtime s[{68+2*t}:{69+2*t}]")
        if cfg.fine:
            a.e("s_waitcnt lgkmcnt(0)")
            for t in range(8): a.e(f"v_mov_b32 v{100+t}, s{68+2*t}")
    else:
        a.e("s_getpc_b64 s[66:67]")
        a.label("L_pc")
        a.e("s_add_u32 s66, s66, L_exit1-L_pc\ns_addc_u32 s67, s67, 0\ns_mov_b32 s48, 1")
        a.label("L_loop")
        a.vq = [{'P'}] * 10
        body(a, 'mid', dma_ops(a, 'N'), True, {'P'})
        a.e("s_sub_u32 s48, s48, 1\ns_cmp_lg_u32 s48, 0\ns_cbranch_scc1 L_loop\ns_setpc_b64 s[66:67]")
        a.label("L_exit1")
        flag_w()
        a.e("s_add_u32 s66, s66, L_exit2-L_exit1\ns_addc_u32 s67, s67, 0\ns_mov_b32 s48, 5\ns_branch L_loop")
        a.label("L_exit2")
        poll_w()
        a.e("s_add_u32 s66, s66, L_exit3-L_exit2\ns_addc_u32 s67, s67, 0\ns_mov_b32 s48, 1\ns_branch L_loop")
        a.label("L_exit3")
    stamp(a, 3)
    if cfg.p1only:
        a.vq = [{'P'}] * 10
        body(a, 'mid', None, False, {'P'})
        body(a, 'last', None, False, None)
        for (i, jm) in ORDER: p1_mfma(a, 1, i, jm)
        a.e("s_nop 7")
        stamp(a, 4)
        dump_stamps(a, 6)
        if cfg.fine:
            a.e(f"buffer_store_dwordx4 v[100:103], v30, {srd(SW)}, 0 offen offset:64\nbuffer_store_dwordx4 v[104:107], v30, {srd(SW)}, 0 offen offset:80")
        a.label("L_end")
        a.e("s_endpgm")
        return a.text()
    spin_until(a, "L_wf", "v28", SW, "v[26:27]", "v_cmp_ne_u64 vcc, v[24:25], v[26:27]\ns_nop 1")
    a.vq = [{'P'}] * 10
    def lw(n):
        s, b = n // 5, n % 5
        g, idx = s // 3, (s % 3) * 5 + b
        return lambda: a.vm(f"buffer_load_dwordx4 {R('a',4*n,4)}, v{90+idx//4}, {srd(SW)}, s{96+g} offen offset:{1024*(idx%4)} sc1", regs('a', 4*n, 4))
    wl = [lw(n) for n in range(60)]
    n8, n9 = cfg.n8, cfg.n9
    body(a, 'mid', wl[:n8], False, {'P'})
    body(a, 'last', wl[n8:n8+n9], False, None)
    wp = n8 + n9
    for (i, jm) in ORDER:
        p1_mfma(a, 1, i, jm)
        if wp < cfg.npre and jm == 1: wl[wp](); wp += 1
    a.e("s_nop 7")
    stamp(a, 4)
    n = 0
    for i in range(3):
        for jm in range(2):
            T = 32 + 8 * (n % 2); P = 48 + 4 * (n % 4)
            k = -(-(cfg.npre - wp) // (6 - n)) if cfg.npre > wp else 0
            n += 1
            gelu_block(a, acc(i, jm), T, P, wl[wp:wp+k]); wp += k
            a.vm(f"buffer_store_dwordx4 {R('v',P,4)}, v19, {srd(SW)}, s{52+jm} offen offset:{512*i} sc1", {'HS'})
    stamp(a, 5)
    while wp < 60: wl[wp](); wp += 1
    a.c("phase-2 addressing (under the store drain)")
    for q in range(4):
        a.e(f"s_add_u32 s43, s36, {q+1}\ns_and_b32 s43, s43, 3")
        if q < 3: a.e(f"s_mul_i32 s{56+q}, s43, 15360\ns_add_u32 s{56+q}, s{56+q}, {P2L+5120*q}")
        a.e(f"s_add_u32 s43, s43, s90\ns_and_b32 s43, s43, 3\ns_lshl_b32 s60, s88, 2\ns_add_u32 s60, s60, s43\ns_mul_i32 s{44+q}, s60, 49152")
    a.need({'HS'})
    a.vm(f"buffer_store_dwordx2 v[24:25], v94, {srd(SW)}, 0 offen sc1")
    a.vm(f"buffer_load_dwordx2 v[26:27], v95, {srd(SW)}, 0 offen sc1", {'HF'})
    stamp(a, 6)
    a.e(f"""v_mov_b32 v2, v90
      v_add_u32 v6, s56, v90
      v_add_u32 v7, s57, v90
      v_add_u32 v8, s58, v90
      s_mul_i32 s62, s36, 15360
      s_add_u32 s62, s62, {P2L}
      v_add_u32 v9, s62, v90
      s_mul_i32 s62, s36, 2816
      s_add_u32 s62, s62, {P2L+61440}
      v_and_b32 v20, 15, v1
      v_mul_u32_u24 v20, 176, v20
      v_lshrrev_b32 v21, 4, v1
      v_lshl_add_u32 v20, v21, 3, v20
      v_add_u32 v10, s62, v20
      s_mul_i32 s63, s60, 20480
      s_mul_i32 s64, s89, 160
      s_add_u32 s63, s63, s64""")
    for i in range(3):
        a.e(f"""v_add_u32 v20, {64*i}, v1
          v_mul_u32_u24 v21, 6554, v20
          v_lshrrev_b32 v21, 16, v21
          v_mul_u32_u24 v22, 10, v21
          v_sub_u32 v22, v20, v22
          v_mul_u32_u24 v23, 176, v21
          v_lshl_add_u32 v23, v22, 4, v23
          v_add_u32 v{11+i}, s62, v23
          v_mul_u32_u24 v21, 1280, v21
          v_lshl_add_u32 v21, v22, 4, v21
          v_add_u32 v{14+i}, s63, v21""")
    a.e(f"v_mov_b32 v20, {OOB:#x}\nv_cmp_gt_u32 vcc, 32, v1\nv_mov_b32 v21, s62\ns_nop 0\nv_cndmask_b32 v16, v20, v16, vcc\nv_cndmask_b32 v13, v21, v13, vcc")
    mk_srd(a, SO, 76, 2048*640*2)
    a.need({'HF'})
    spin_until(a, "L_hf", "v95", SW, "v[26:27]", "v_cmp_ne_u64 vcc, v[24:25], v[26:27]\ns_nop 1")
    a.vq = []
    stamp(a, 7)
    def lh(n):
        q, s = n // 12, n % 12
        d = HR + 4 * (n % 16)
        def f():
            if s % 3 == 0: a.e(f"s_add_u32 s61, s{44+q}, s{92+s//3}")
            a.vm(f"buffer_load_dwordx4 {R('v',d,4)}, v2, {srd(SW)}, s61 offen offset:{1024*(s%3)} sc1", regs('v', d, 4))
        return f
    hl = [lh(n) for n in range(48)]
    pos = 0
    while pos <= cfg.ahead: hl[pos](); pos += 1
    for n in range(48):
        q, s = n // 12, n % 12
        if n == 1: stamp(a, 8)
        C = ACC2[q % 2]; Pv = ACC2[(q + 1) % 2]
        for b in range(5):
            A = (s * 5 + b) * 4; B = HR + 4 * (n % 16)
            a.need(regs('v', B, 4))
            a.e(f"v_mfma_f32_16x16x32_bf16 {R('v',C+4*b,4)}, {R('a',A,4)}, {R('v',B,4)}, {'0' if s == 0 else R('v',C+4*b,4)}")
            if b == 1 and pos < 48: hl[pos](); pos += 1
            if q > 0 and s == 2:
                a.lds(f"ds_write_b128 v{6+q-1}, {R('v',Pv+4*b,4)} offset:{1024*b}", {'PW'})
            if q == 3 and s == 4 and b == 4:
                a.need({'PW'}); a.e("s_barrier")
            if q == 3 and s in (5, 6, 7):
                d = PART + 20 * (s - 5) + 4 * b
                a.lds(f"ds_read_b128 {R('v',d,4)}, v9 offset:{5120*(s-5)+1024*b}", regs('v', d, 4))
            if q == 3 and s in (9, 10):
                d0 = PART + 4 * b; d1 = PART + 20 * (s - 8) + 4 * b
                a.need(regs('v', d0, 4) | regs('v', d1, 4))
                for h in range(2): a.e(f"v_pk_add_f32 {R('v',d0+2*h,2)}, {R('v',d0+2*h,2)}, {R('v',d1+2*h,2)}")
    C = ACC2[1]
    a.e("s_nop 3")
    stamp(a, 9)
    for b in range(5):
        for h in range(2): a.e(f"v_pk_add_f32 {R('v',PART+4*b+2*h,2)}, {R('v',PART+4*b+2*h,2)}, {R('v',C+4*b+2*h,2)}")
    for b in range(5):
        for h in range(2): a.e(f"v_cvt_pk_bf16_f32 v{224+2*b+h}, v{PART+4*b+2*h}, v{PART+4*b+2*h+1}")
        a.lds(f"ds_write_b64 v10, {R('v',224+2*b,2)} offset:{32*b}", {'OW'})
    a.need({'OW'})
    for i in range(3): a.lds(f"ds_read_b128 {R('v',236+4*i,4)}, v{11+i}", regs('v', 236+4*i, 4))
    for i in range(3):
        a.need(regs('v', 236+4*i, 4))
        a.vm(f"buffer_store_dwordx4 {R('v',236+4*i,4)}, v{14+i}, {srd(SO)}, 0 offen")
    stamp(a, 10)
    dump_stamps(a, 12)
    a.label("L_end")
    a.e("s_endpgm")
    return a.text()

HEADER = """; GEGLU MLP, one launch:  out = (gelu_tanh(x Wg) * (x Wu)) Wd   x[2048,640] Wg,Wu[640,1536] Wd[1536,640] bf16
; @launch grid=(256,1,1) block=(256,1,1) lds=%d
.amdgcn_target "amdgcn-amd-amdhsa--gfx950"
.text
.globl %s_kernel
.p2align 8
.type %s_kernel,@function
%s_kernel:
"""
FOOTER = """.section .rodata,"a"
.p2align 6
.amdhsa_kernel %s_kernel
  .amdhsa_next_free_vgpr 512
  .amdhsa_next_free_sgpr 102
  .amdhsa_accum_offset 256
  .amdhsa_group_segment_fixed_size 0
  .amdhsa_kernarg_size 56
  .amdhsa_user_sgpr_count 2
  .amdhsa_user_sgpr_kernarg_segment_ptr 1
  .amdhsa_system_sgpr_workgroup_id_x 1
  .amdhsa_float_denorm_mode_32 3
.end_amdhsa_kernel
"""
cfg.n8 = 10; cfg.n9 = 10
if __name__ == "__main__":
    out = sys.argv[1]
    for kv in sys.argv[2:]:
        k, v = kv.split("=")
        setattr(cfg, k, (int(v) if v.lstrip('-').isdigit() else v))
    open(out, "w").write(HEADER % (3*STAGE+4*3072, NAME, NAME, NAME) + kernel() + FOOTER % NAME)
```

```python
import math, sys, os
from asmlib import *

NAME = "standalone__glu_gated_geglu__prompt"
H_OFF, WD_OFF, FW_OFF, FH_OFF, ST_OFF, WS_BYTES = 0, 0x600000, 0x7E0000, 0x7F0000, 0x800000, 0x900000
OOB = 0x40000000
STAGE = 40960
K0 = -2.0 * math.log2(math.e) * math.sqrt(2.0 / math.pi)
K1 = K0 * 0.044715
SX, SG_, SU, SD, SW, SO, SDBG = 8, 12, 16, 20, 24, 28, 32
def srd(n): return f"s[{n}:{n+3}]"

class Cfg:
    stamps = 0; rot = "xcd"; ftmap = 3; p2map = 1; rho = 0; rho2 = 0
    n8 = 5; n9 = 10; ng = 14; na = 10; nc = 8; gapper = 3
    ahead = 11; spin = 100000; hsc = " sc1"; outsc = ""
    t1gap = 8
    early = 0; tpoll = 7; cpf = 0; pre = 100; tailb = 4; nb = 21; pb = 4; two = 1; psleep = 0; fine2 = 0; pro = 0; nored = 0
cfg = Cfg()

STV = 136
def stamp(a, i):
    if cfg.stamps:
        a.e(f"s_memrealtime s[84:85]\ns_memtime s[86:87]\ns_waitcnt lgkmcnt(0)\nv_mov_b32 v{STV+2*i}, s84\nv_mov_b32 v{STV+1+2*i}, s86")
        a.lq = []
def dump_stamps(a, n):
    if not cfg.stamps: return
    a.e("s_waitcnt vmcnt(0)")
    stamp(a, n - 1)
    a.e(f"s_lshl_b32 s82, s2, 2\ns_add_u32 s82, s82, s36\ns_lshl_b32 s82, s82, 7\ns_add_u32 s82, s82, {ST_OFF}\nv_mov_b32 v31, s82\ns_mov_b64 exec, 1\nv_mov_b32 v30, s80\nbuffer_store_dword v30, v31, {srd(SW)}, 0 offen offset:96")
    for i in range(0, 2 * n, 2):
        a.e(f"buffer_store_dwordx2 v[{STV+i}:{STV+i+1}], v31, {srd(SW)}, 0 offen offset:{4*i}")

XF = [32, 52]; WF = [40, 60]; ACC = 160
FP = [8,10,12,14,16,18,20,22,40,42,44,46,48]
SK = [92,93,94,95,96,97,98,99,73,74,75,76]
LO = 130; VHF_ST = 134; VHF_PL = 135
def acc(i, jm): return ACC + 16 * (2 * i + jm)

class Fill:
    def __init__(self, a, text=""):
        self.a = a; self.q = []
        self.add(text)
    def add(self, text):
        for l in text.split("\n"):
            l = l.strip()
            if l: self.q.append(l.replace("|", "\n"))
    def emit(self, n):
        while n > 0 and self.q:
            c = self.q.pop(0); self.a.e(c); n -= c.count("\n") + 1
    def flush(self): self.emit(1 << 30)

def p1_reads(a, s, st):
    def rx(jm):
        d = XF[st] + 4 * jm
        return lambda: a.lds(f"ds_read_b128 {R('v',d,4)}, v{12+s} offset:{4096*jm}", regs('v', d, 4))
    def rw(i, j):
        d = WF[st] + 4 * i + 2 * j
        return lambda: a.lds(f"ds_read_b64_tr_b16 {R('v',d,2)}, v{16+i} offset:{16384+(16*s+4*j)*192}", regs('v', d, 2))
    return [rx(0), rw(0,0), rw(0,1), rx(1), rw(1,0), rw(1,1), rw(2,0), rw(2,1)]

def p1_mfma(a, st, i, jm, first=False):
    A = WF[st] + 4 * i; B = XF[st] + 4 * jm; D = acc(i, jm)
    a.need(regs('v', A, 4) | regs('v', B, 4))
    a.e(f"v_mfma_f32_32x32x16_bf16 {R('v',D,16)}, {R('v',A,4)}, {R('v',B,4)}, {'0' if first else R('v',D,16)}")

def dma_ops(a, tag):
    ops = []
    def mk(m0src, v, sr, so, off):
        def f():
            if m0src is not None:
                a.e(f"s_add_u32 m0, s42, s{m0src}\ns_nop 0")
            a.vm(f"buffer_load_dwordx4 v{v}, {srd(sr)}, s{so} offen offset:{off} lds", {tag})
        return f
    for i in range(4): ops.append(mk(43 if i == 0 else None, 2 + i, SX, 40, 1024 * i))
    for i in range(3): ops.append(mk(44 if i == 0 else None, 6 + i, SG_, 41, 1024 * i))
    for i in range(3): ops.append(mk(45 if i == 0 else None, 9 + i, SU, 41, 1024 * i))
    return ops
def dma_advance(a):
    a.e("s_add_u32 s40, s40, 128\ns_add_u32 s41, s41, 196608\ns_cmp_eq_u32 s40, s55\ns_cselect_b32 s40, s50, s40\ns_cselect_b32 s41, s51, s41")
    a.e(f"s_add_u32 s42, s42, {STAGE}\ns_cmp_eq_u32 s42, {3*STAGE}\ns_cselect_b32 s42, 0, s42")
def rd_advance_s(a):
    a.e(f"s_add_u32 s46, s46, {STAGE}\ns_cmp_eq_u32 s46, {3*STAGE}\ns_cselect_b32 s47, {(-2*STAGE) & 0xffffffff:#x}, s49\ns_cselect_b32 s46, 0, s46")

VPOS = [(0,4),(0,5),(1,3),(1,4),(1,5),(2,3),(2,4),(2,5),(3,2),(3,3)]
ORDER = [(0,0),(0,1),(1,0),(1,1),(2,0),(2,1)]
def body(a, t_kind, vmops, is_dma, wait_tag, extra=None, fill=None, nord0=0):
    pos = {}
    if vmops:
        if is_dma: P = VPOS
        else:
            allp = [(s, g) for s in range(4) for g in range(6)]
            lo = 24 - min(24, int(len(vmops) * cfg.gapper))
            P = [allp[lo + (k * (24 - lo)) // len(vmops)] for k in range(len(vmops))]
        for k, f in enumerate(vmops): pos.setdefault(P[k], []).append(f)
    for seg in range(4):
        rd = p1_reads(a, seg, seg % 2)
        st = (seg + 1) % 2
        for g, (i, jm) in enumerate(ORDER):
            used = 0
            has_m = not (seg == 0 and t_kind == 'first')
            if has_m: p1_mfma(a, st, i, jm, first=(t_kind == 'first' and seg == 1))
            if g < 4:
                rd[2*g](); rd[2*g+1](); used += 2
            if extra and (seg, g) in extra: extra[(seg, g)](); used += 1
            for f in pos.get((seg, g), []): f(); used += 2
            if seg == 0 and g == 1 and t_kind != 'last': rd_advance_s(a); used += 4
            if seg == 3 and g == 3 and t_kind != 'last':
                for v in range(12, 15): a.e(f"v_add_u32 v{v}, s47, v{v}")
                used += 3
            if seg == 3 and g == 4 and is_dma: dma_advance(a); used += 8
            if seg == 3 and g == 5 and t_kind != 'last':
                for v in range(15, 19): a.e(f"v_add_u32 v{v}, s47, v{v}")
                used += 4
            if fill and has_m: fill.emit(5 - used)
    if fill: fill.flush()
    if t_kind != 'last':
        l = a._cnt(a.vq, wait_tag)
        a.wait(vm=len(a.vq) - l - 1, lgkm=0)
        a.e("s_barrier")

def gelu_all(a, vm_ops, store):
    blocks = [(i, jm) for jm in range(2) for i in range(3)]
    def T(b): return 32 + 8 * (b % 2)
    def P(b): return 48 + 4 * (b % 4)
    def pk(op, d, x, y, z=None, mod=""):
        return f"v_pk_{op}_f32 {R('v',d,2)}, {x}, {y}" + (f", {z}" if z else "") + mod
    def S1(b):
        A = acc(*blocks[b]); t = T(b)
        return ([pk("mul", t+2*p, R('v',A+2*p,2), R('v',A+2*p,2)) for p in range(4)] +
                [pk("fma", t+2*p, R('v',t+2*p,2), "v[20:21]", "v[22:23]") for p in range(4)] +
                [pk("mul", t+2*p, R('v',t+2*p,2), R('v',A+2*p,2)) for p in range(4)])
    def S3(b):
        A = acc(*blocks[b]); t = T(b)
        return ([pk("mul", t+2*p, R('v',t+2*p,2), R('v',A+2*p,2)) for p in range(4)] +
                [pk("mul", t+2*p, R('v',t+2*p,2), R('v',A+8+2*p,2)) for p in range(4)] +
                [f"v_cvt_pk_bf16_f32 v{P(b)+p}, v{t+2*p}, v{t+2*p+1}" for p in range(4)])
    vm_ops = list(vm_ops); nv = len(vm_ops); ph = [0]
    def vm_slot():
        ph[0] += 1
        want = (ph[0] * nv + 11) // 12
        while nv - len(vm_ops) < want and vm_ops: vm_ops.pop(0)()
    for l in S1(0): a.e(l)
    for b in range(6):
        t = T(b)
        other = S3(b - 1) if b > 0 else []
        k = 0
        for r in range(8):
            a.e(f"v_exp_f32 v{t+r}, v{t+r}")
            for _ in range(2 if r < 4 else 1):
                if k < len(other): a.e(other[k]); k += 1
            if r >= 4:
                p = r - 4 if r < 7 else None
                if r == 4 and b > 0: pass
                a.e(pk("add", t+2*(r-4), R('v',t+2*(r-4),2), "1.0", mod=" op_sel_hi:[1,0]")) if r < 7 else None
        if b > 0: store(b - 1, P(b - 1))
        else: a.e("s_nop 0")
        a.e(pk("add", t+6, R('v',t+6,2), "1.0", mod=" op_sel_hi:[1,0]"))
        vm_slot()
        other = S1(b + 1) if b < 5 else []
        k = 0
        for r in range(8):
            a.e(f"v_rcp_f32 v{t+r}, v{t+r}")
            for _ in range(2 if r < 4 else 1):
                if k < len(other): a.e(other[k]); k += 1
        vm_slot()
    for l in S3(5): a.e(l)
    store(5, P(5))

def spin_until(a, lab, voff, sr, data, cmp, soff=0):
    a.e(cmp)
    a.e(f"s_mov_b32 s83, {cfg.spin}\ns_cbranch_vccz {lab}_ok")
    a.label(f"{lab}_spin")
    if cfg.psleep: a.e(f"s_sleep {cfg.psleep}")
    a.e(f"buffer_load_dwordx2 {data}, {voff}, {srd(sr)}, {soff} offen sc1\ns_waitcnt vmcnt(0)")
    a.e(cmp)
    a.e(f"s_sub_u32 s83, s83, 1\ns_cbranch_vccz {lab}_ok\ns_cmp_lg_u32 s83, 0\ns_cbranch_scc1 {lab}_spin")
    a.label(f"{lab}_ok")

P2L = STAGE
HR = 160; ACC2 = [32, 52]; PART = 208; OPK = 240; RS = 336; PB = 4 * 16 * RS

def div_rows(src, q, r, tmp, magic, sh, d):
    return f"v_mul_u32_u24 {q}, {magic}, {src}\nv_lshrrev_b32 {q}, {sh}, {q}\nv_mul_u32_u24 {tmp}, {d}, {q}\nv_sub_u32 {r}, {src}, {tmp}"

def kernel():
    a = Asm()
    a.e("s_cmp_ge_u32 s2, 256\ns_cbranch_scc1 L_end")
    if cfg.pro: a.e("s_memtime s[88:89]\ns_memrealtime s[90:91]")
    for n, off in ((SX, 0), (SG_, 8), (SU, 16), (SD, 24), (SW, 48), (SDBG, 40), (SO, 32)):
        a.e(f"s_load_dwordx2 s[{n}:{n+1}], s[0:1], {off}")
    a.e("v_lshrrev_b32 v107, 6, v0\nv_and_b32 v1, 63, v0\nv_readfirstlane_b32 s36, v107")
    def srd_tail(n, size): a.e(f"s_mov_b32 s{n+2}, {size}\ns_mov_b32 s{n+3}, 0x20000")
    srd_tail(SX, 2048*640*2)
    a.c("x DMA voffsets v2..v5: row = 32*wave + 8*i + lane/8, chunk = (lane&7) ^ ((row>>1)&7)")
    a.e(f"""v_lshrrev_b32 v108, 3, v1
      v_lshl_add_u32 v108, v107, 5, v108
      v_mul_u32_u24 v108, 1280, v108
      v_lshrrev_b32 v109, 4, v1
      v_and_b32 v110, 7, v1
      v_xor_b32 v109, v110, v109
      v_lshl_add_u32 v2, v109, 4, v108
      v_xor_b32 v109, 4, v109
      v_lshl_add_u32 v3, v109, 4, v108
      v_add_u32 v4, {2*9216}, v2
      v_add_u32 v3, 9216, v3
      v_add_u32 v5, {2*9216}, v3""")
    a.c("decode: s39 xcd, s54 idx, s37 m-tile, s38 f-tile, s59 first k-tile")
    a.e("s_and_b32 s39, s2, 7\ns_lshr_b32 s54, s2, 3")
    if cfg.ftmap == 2:
        a.e("s_lshr_b32 s60, s54, 4\ns_lshl_b32 s37, s39, 1\ns_add_u32 s37, s37, s60\ns_and_b32 s38, s54, 15")
    elif cfg.ftmap == 3:
        a.e("s_lshr_b32 s60, s54, 3\ns_and_b32 s37, s39, 6\ns_lshl_b32 s37, s37, 1\ns_add_u32 s37, s37, s60\ns_and_b32 s38, s39, 1\ns_lshl_b32 s38, s38, 3\ns_and_b32 s61, s54, 7\ns_add_u32 s38, s38, s61")
    else:
        a.e("s_lshr_b32 s60, s54, 2\ns_and_b32 s61, s54, 3\ns_and_b32 s37, s39, 4\ns_lshl_b32 s37, s37, 1\ns_add_u32 s37, s37, s60\ns_and_b32 s38, s39, 3")
        a.e("s_lshl_b32 s62, s61, 2\ns_add_u32 s38, s38, s62" if cfg.ftmap else "s_lshl_b32 s38, s38, 2\ns_add_u32 s38, s38, s61")
    K0R = {"xcd": "s39", "none": "0"}[cfg.rot]
    a.e(f"""s_mul_i32 s50, s37, {128*1280}
      s_lshl_b32 s40, {K0R}, 7
      s_add_u32 s40, s40, s50
      s_lshl_b32 s43, s36, 12
      s_mov_b32 m0, s43""")
    wset = Fill(a, f"""s_mul_i32 s51, s38, 192
      s_mul_i32 s41, {K0R}, 196608
      s_add_u32 s41, s41, s51
      s_mul_i32 s44, s36, 3072
      s_add_u32 s45, s44, 28672
      s_add_u32 s44, s44, 16384
      s_mov_b32 s{SG_+2}, {640*1536*2}
      s_mov_b32 s{SG_+3}, 0x20000
      s_mov_b32 s{SU+2}, {640*1536*2}
      s_mov_b32 s{SU+3}, 0x20000
      v_mul_u32_u24 v107, 49152, v107""")
    for i in range(3):
        src = "v1"
        if i: wset.add(f"v_add_u32 v31, {64*i}, v1"); src = "v31"
        wset.add(div_rows(src, "v108", "v109", "v109", 43691, 19, 12))
        wset.add(f"v_mul_u32_u24 v108, 3072, v108\nv_add_u32 v108, v107, v108")
        if i: wset.add(f"v_subrev_u32 v108, {1024*i}, v108")
        wset.add(f"v_lshl_add_u32 v{6+i}, v109, 4, v108\nv_xor_b32 v109, 2, v109\nv_lshl_add_u32 v{9+i}, v109, 4, v108")
    wset.emit(cfg.pre)
    a.e("s_waitcnt lgkmcnt(0)")
    stamp(a, 0)
    for i in range(4):
        a.vm(f"buffer_load_dwordx4 v{2+i}, {srd(SX)}, s40 offen offset:{1024*i} lds", {'T0'})
        wset.emit(10)
    wset.flush()
    a.e("s_mov_b32 m0, s44\ns_mov_b32 s42, 0")
    for i in range(3): a.vm(f"buffer_load_dwordx4 v{6+i}, {srd(SG_)}, s41 offen offset:{1024*i} lds", {'T0'})
    a.e("s_mov_b32 m0, s45\ns_add_u32 s55, s50, 1280")
    for i in range(3): a.vm(f"buffer_load_dwordx4 v{9+i}, {srd(SU)}, s41 offen offset:{1024*i} lds", {'T0'})
    dma_advance(a)
    srd_tail(SDBG, 256)
    a.c("launch tag: workgroup 0 / wave 3 publishes the real-time counter in d_debug")
    a.e("v_mov_b32 v30, 0\ns_lshl_b32 s60, s2, 2\ns_add_u32 s60, s60, s36\ns_cmp_lg_u32 s60, 3\ns_cbranch_scc1 L_notag")
    a.e(f"s_memrealtime s[60:61]\ns_waitcnt lgkmcnt(0)\ns_or_b32 s61, s61, 0x80000000\nv_mov_b32 v24, s60\nv_mov_b32 v25, s61\nbuffer_store_dwordx2 v[24:25], v30, {srd(SDBG)}, 0 offen sc1")
    a.label("L_notag")
    if cfg.cpf:
        a.c("pull the rest of this kernel's code into L2")
        a.e(f"s_getpc_b64 s[56:57]\ns_mov_b32 s58, {cfg.cpf*1024}\ns_mov_b32 s59, 0x20000\nv_lshlrev_b32 v31, 7, v0")
        a.vm("buffer_load_dword v31, v31, s[56:59], 0 offen", {'T0'})
    if cfg.pro:
        a.e("s_memtime s[68:69]")
        for k, n in enumerate((12, 9, 6, 3, 0)): a.e(f"s_waitcnt vmcnt({n})\ns_memtime s[{70+2*k}:{71+2*k}]")
        a.e("s_waitcnt lgkmcnt(0)")
        a.e(f"s_lshl_b32 s82, s2, 2\ns_add_u32 s82, s82, s36\ns_lshl_b32 s82, s82, 7\ns_add_u32 s82, s82, {ST_OFF+0x40000}\nv_mov_b32 v31, s82\ns_mov_b64 exec, 1")
        for k, r in enumerate((88, 86, 68, 70, 72, 74, 76, 78, 90)): a.e(f"v_mov_b32 v30, s{r}\nbuffer_store_dword v30, v31, {srd(SW)}, 0 offen offset:{4*k}\ns_nop 1")
        a.label("L_end"); a.e("s_endpgm")
        return a.text()
    f1 = Fill(a, f"""s_mov_b32 s46, 0
      s_mov_b32 s49, {STAGE}
      s_mov_b32 s{SD+2}, {1536*640*2}
      s_mov_b32 s{SD+3}, 0x20000
      s_mov_b32 s{SW+2}, {WS_BYTES}
      s_mov_b32 s{SW+3}, 0x20000
      s_mov_b32 s{SO+2}, {2048*640*2}
      s_mov_b32 s{SO+3}, 0x20000
      s_mul_i32 s58, s54, 3
      s_add_u32 s58, s58, s36
      s_mul_i32 s56, s58, {16*1280}
      s_mul_i32 s60, s39, 160
      s_add_u32 s56, s56, s60
      s_cmp_eq_u32 s36, 3|s_cselect_b32 s61, {OOB:#x}, 0
      s_add_u32 s56, s56, s61
      v_cmp_gt_u32 vcc, 32, v1
      s_mul_i32 s62, s36, 3072
      s_add_u32 s62, s62, {3*STAGE}""")
    for i in range(3):
        src = "v1"
        if i: f1.add(f"v_add_u32 v31, {64*i}, v1"); src = "v31"
        f1.add(div_rows(src, "v108", "v109", "v109", 6554, 16, 10))
        f1.add(f"v_mul_u32_u24 v108, 1280, v108\nv_lshl_add_u32 v{72+i}, v109, 4, v108")
        if i: f1.add(f"v_subrev_u32 v{72+i}, {1024*i}, v{72+i}")
    f1.add(f"v_mov_b32 v31, {OOB:#x}\nv_cndmask_b32 v74, v31, v74, vcc")
    f1.add(f"""s_lshr_b32 s63, s36, 1
      s_and_b32 s64, s36, 1
      v_and_b32 v107, 31, v1
      v_lshrrev_b32 v108, 5, v1
      v_bfe_u32 v109, v1, 1, 3
      v_xor_b32 v109, v109, v108
      s_lshl_b32 s65, s63, 13
      v_lshlrev_b32 v110, 7, v107
      v_add_u32 v110, s65, v110
      v_lshl_add_u32 v12, v109, 4, v110
      v_xor_b32 v31, 2, v109
      v_lshl_add_u32 v13, v31, 4, v110
      v_xor_b32 v31, 4, v109
      v_lshl_add_u32 v14, v31, 4, v110
      v_xor_b32 v31, 6, v109
      v_lshl_add_u32 v15, v31, 4, v110
      v_bfe_u32 v110, v1, 4, 1
      v_bfe_u32 v109, v1, 2, 2
      v_lshl_add_u32 v31, v108, 3, v109
      v_mul_u32_u24 v31, 192, v31
      v_and_b32 v88, 3, v1
      v_lshl_add_u32 v31, v88, 3, v31
      v_mul_u32_u24 v89, 12288, v110
      v_add_u32 v31, v31, v89
      s_mul_i32 s65, s64, 3
      v_xor_b32 v89, s65, v110
      v_lshl_add_u32 v16, v89, 5, v31
      s_add_u32 s60, s65, 1
      v_xor_b32 v89, s60, v110
      v_lshl_add_u32 v17, v89, 5, v31
      s_add_u32 s60, s65, 2
      v_xor_b32 v89, s60, v110
      v_lshl_add_u32 v18, v89, 5, v31
      v_lshl_add_u32 v31, v110, 2, v109
      v_mul_u32_u24 v31, 160, v31
      v_lshl_add_u32 v31, v108, 5, v31
      v_lshl_add_u32 v31, v88, 3, v31
      v_add_u32 v75, s62, v31
      s_lshr_b32 s59, s58, 1
      s_mul_i32 s59, s59, 5120
      s_and_b32 s60, s58, 1
      s_lshl_b32 s60, s60, 9
      s_add_u32 s59, s59, s60
      s_mul_i32 s60, s39, 245760
      s_add_u32 s59, s59, s60
      s_add_u32 s59, s59, s61
      s_add_u32 s59, s59, {WD_OFF}
      v_lshlrev_b32 v31, 4, v107
      v_lshl_add_u32 v31, v108, 10, v31
      v_add_u32 v88, s59, v31
      v_add_u32 v89, 4096, v88
      v_mov_b32 v31, {OOB:#x}
      v_cndmask_b32 v89, v31, v89, vcc
      s_mul_i32 s60, s39, 96
      s_add_u32 s60, s60, s58
      s_lshl_b32 s60, s60, 3
      s_add_u32 s60, s60, s61
      s_add_u32 s60, s60, {FW_OFF}
      v_mov_b32 v29, s60""")
    for f in dma_ops(a, 'T1'):
        f1.emit(cfg.t1gap); f()
    dma_advance(a)
    f1.flush()
    stamp(a, 1)
    a.need({'T0'})
    a.e("s_barrier")
    stamp(a, 2)
    r = []
    if cfg.p2map == 0:
        r.append("s_lshr_b32 s88, s54, 3\ns_lshl_b32 s58, s39, 2\ns_add_u32 s88, s88, s58\ns_and_b32 s89, s54, 7")
    else:
        r.append("s_lshr_b32 s88, s54, 2\ns_lshr_b32 s58, s39, 1\ns_lshl_b32 s58, s58, 3\ns_add_u32 s88, s88, s58\ns_and_b32 s89, s54, 3\ns_and_b32 s58, s39, 1\ns_lshl_b32 s58, s58, 2\ns_add_u32 s89, s89, s58")
    r.append({0: "s_mov_b32 s90, 0", 1: "s_and_b32 s90, s89, 1", 2: "s_lshr_b32 s90, s89, 2\ns_and_b32 s90, s90, 1", 3: "s_lshr_b32 s90, s89, 1\ns_and_b32 s90, s90, 1"}[cfg.rho])
    r.append({0: "s_mov_b32 s91, 0",
              5: "s_and_b32 s91, s88, 7\ns_mul_i32 s91, s91, 3\ns_add_u32 s91, s91, 1\ns_lshr_b32 s91, s91, 1",
              6: "s_and_b32 s91, s88, 3\ns_mul_i32 s91, s91, 3",
              7: "s_add_u32 s91, s88, s89\ns_and_b32 s91, s91, 3\ns_mul_i32 s91, s91, 3",
              8: "s_and_b32 s91, s89, 3\ns_mul_i32 s91, s91, 3",
              9: "s_add_u32 s91, s88, s89\ns_and_b32 s91, s91, 1\ns_mul_i32 s91, s91, 6",
              10: "s_and_b32 s91, s89, 1\ns_mul_i32 s91, s91, 6"}[cfg.rho2])
    r.append(f"s_mul_i32 s58, s36, 12\ns_mul_i32 s77, s89, 245760\ns_add_u32 s77, s77, {WD_OFF}\ns_add_u32 s59, s58, 12\ns_lshl_b32 s59, s59, 10\ns_add_u32 s60, s58, s91\ns_lshl_b32 s58, s58, 10\ns_lshl_b32 s{SK[0]}, s60, 10")
    for k in range(1, 12):
        r.append(f"s_add_u32 s{SK[k]}, s{SK[k-1]}, 1024|s_cmp_eq_u32 s{SK[k]}, s59|s_cselect_b32 s{SK[k]}, s58, s{SK[k]}")
    r.append(f"s_mul_i32 s101, s58, 5\ns_add_u32 s101, s101, s77\ns_add_u32 s100, s101, {60*1024}\ns_mul_i32 s78, s{SK[0]}, 5\ns_add_u32 s78, s78, s77\ns_mul_i32 s81, s36, 10240\ns_add_u32 s81, s81, {3*STAGE}")
    r.append(f"""v_lshlrev_b32 v{LO}, 4, v1
      v_add_u32 v99, s81, v{LO}
      v_add_u32 v{LO+1}, 4096, v{LO}
      s_mul_i32 s60, s89, 96
      s_mul_i32 s61, s36, 24
      s_add_u32 s60, s60, s61
      s_lshl_b32 s60, s60, 3
      s_add_u32 s60, s60, {FW_OFF}
      v_min_u32 v107, 23, v1
      v_lshlrev_b32 v107, 3, v107
      v_add_u32 v28, s60, v107""")
    f0 = Fill(a, "\n".join(r))
    f8 = Fill(a, f"""v_bfe_u32 v107, v1, 4, 1
      v_mul_u32_u24 v107, 49152, v107
      v_lshrrev_b32 v108, 5, v1
      v_lshl_add_u32 v107, v108, 8, v107
      v_and_b32 v108, 15, v1
      v_lshl_add_u32 v19, v108, 4, v107
      s_lshl_b32 s52, s37, 3
      s_lshl_b32 s60, s63, 2
      s_add_u32 s52, s52, s60
      s_mul_i32 s52, s52, 49152
      s_mul_i32 s60, s38, 6
      s_add_u32 s60, s60, s65
      s_lshl_b32 s60, s60, 9
      s_add_u32 s52, s52, s60
      s_add_u32 s53, s52, {2*49152}
      s_lshl_b32 s60, s37, 1
      s_add_u32 s60, s60, s63
      s_lshl_b32 s60, s60, 2
      s_lshr_b32 s61, s38, 2
      s_add_u32 s60, s60, s61
      s_lshl_b32 s60, s60, 4
      s_and_b32 s61, s38, 3
      s_lshl_b32 s61, s61, 1
      s_add_u32 s60, s60, s61
      s_add_u32 s60, s60, s64
      s_lshl_b32 s60, s60, 3
      s_add_u32 s60, s60, {FH_OFF}
      v_mov_b32 v{VHF_ST}, s60
      s_lshl_b32 s60, s88, 2
      s_add_u32 s60, s60, s36
      s_lshl_b32 s60, s60, 7
      s_add_u32 s60, s60, {FH_OFF}
      v_and_b32 v107, 7, v1
      v_lshlrev_b32 v107, 3, v107
      v_add_u32 v{VHF_PL}, s60, v107
      s_mov_b32 s79, 0x4000
      v_mov_b32 v20, {f32hex(K1)}
      v_mov_b32 v21, {f32hex(K1)}
      v_mov_b32 v22, {f32hex(K0)}
      v_mov_b32 v23, {f32hex(K0)}""")
    f9 = Fill(a, f"""s_lshl_b32 s60, s88, 2
      s_add_u32 s61, s60, s90
      s_mul_i32 s68, s61, 49152
      s_mul_i32 s4, s61, {16*1280}
      s_xor_b32 s61, s61, 1
      s_mul_i32 s69, s61, 49152
      s_mul_i32 s5, s61, {16*1280}
      s_add_u32 s70, s68, {2*49152}
      s_add_u32 s71, s69, {2*49152}
      s_mul_i32 s62, s36, {16*RS}
      s_add_u32 s62, s62, {P2L}
      v_and_b32 v107, 15, v1
      v_mul_u32_u24 v107, {RS}, v107
      v_lshrrev_b32 v108, 4, v1
      v_lshl_add_u32 v107, v108, 4, v107
      v_add_u32 v96, s62, v107
      v_min_u32 v31, 39, v1
      """ + div_rows("v31", "v108", "v109", "v109", 6554, 16, 10) + f"""
      s_mul_i32 s62, s36, {4*RS}
      s_add_u32 s62, s62, {P2L}
      v_mul_u32_u24 v107, {RS}, v108
      v_lshl_add_u32 v107, v109, 5, v107
      v_add_u32 v97, s62, v107
      v_cmp_gt_u32 vcc, 40, v1
      v_mul_u32_u24 v108, 1280, v108
      v_lshl_add_u32 v98, v109, 4, v108
      v_mov_b32 v107, {OOB:#x}
      v_cndmask_b32 v98, v107, v98, vcc
      s_mul_i32 s72, s36, {4*1280}
      s_mul_i32 s60, s89, 160
      s_add_u32 s72, s72, s60
      s_add_u32 s4, s4, s72
      s_add_u32 s5, s5, s72
      s_add_u32 s6, s4, {32*1280}
      s_add_u32 s7, s5, {32*1280}""")

    def wr(i):
        def f():
            if i == 0: a.e("s_mov_b32 m0, s62\ns_nop 0")
            a.vm(f"buffer_load_dwordx4 v{72+i}, {srd(SD)}, s56 offen offset:{1024*i} lds", {'WR'})
        return f
    def ldtag(): a.vm(f"buffer_load_dwordx2 v[24:25], v30, {srd(SDBG)}, 0 offen sc1", {'TAG'})
    body(a, 'first', dma_ops(a, 'T2'), True, {'T1'}, extra={(0,1): wr(0), (0,2): wr(1), (0,3): (lambda: (wr(2)(), ldtag()))}, fill=f0)
    a.e("s_getpc_b64 s[66:67]")
    a.label("L_pc")
    a.e("s_add_u32 s66, s66, L_exit1-L_pc\ns_addc_u32 s67, s67, 0\ns_mov_b32 s48, 1")
    a.label("L_loop")
    a.vq = [{'P'}] * 10
    body(a, 'mid', dma_ops(a, 'N'), True, {'P'})
    a.e("s_sub_u32 s48, s48, 1\ns_cmp_lg_u32 s48, 0\ns_cbranch_scc1 L_loop\ns_setpc_b64 s[66:67]")
    a.label("L_exit1")
    a.c("re-tile the raw Wd piece (landed: older than the tile waited for) and write it out")
    for o in range(3):
        for j in range(2):
            d = 76 + 4*o + 2*j
            a.lds(f"ds_read_b64_tr_b16 {R('v',d,2)}, v75 offset:{64*o+1280*j}", regs('v', d, 2))
    a.e("s_add_u32 s66, s66, L_exit1b-L_exit1\ns_addc_u32 s67, s67, 0\ns_mov_b32 s48, 1")
    for o in range(3):
        d = 76 + 4*o
        a.need(regs('v', d, 4))
        a.e(f"buffer_store_dwordx4 {R('v',d,4)}, v{88 if o < 2 else 89}, {srd(SW)}, 0 offen offset:{2048*o if o < 2 else 0} sc1")
    a.e("s_branch L_loop")
    a.label("L_exit1b")
    spin_until(a, "L_tag", "v30", SDBG, "v[24:25]", "v_cmp_eq_u32 vcc, 0, v25\ns_nop 1")
    a.e(f"buffer_store_dwordx2 v[24:25], v29, {srd(SW)}, 0 offen sc1")
    def lw(n):
        s, b = n // 5, n % 5
        def f():
            if b == 0: a.e(f"s_mul_i32 s78, s{SK[s]}, 5\ns_add_u32 s78, s78, s77")
            a.vm(f"buffer_load_dwordx4 {R('a',4*n,4)}, v{LO+b//4}, {srd(SW)}, s78 offen offset:{1024*(b%4)} sc1", regs('a', 4*n, 4))
        return f
    wl = [lw(n) for n in range(60)]
    def take(n):
        r = wl[:n]; del wl[:n]; return r
    a.e(f"s_add_u32 s66, s66, L_exit2-L_exit1b\ns_addc_u32 s67, s67, 0\ns_mov_b32 s48, {cfg.tpoll-3}\ns_branch L_loop")
    a.label("L_exit2")
    a.e(f"buffer_load_dwordx2 v[26:27], v28, {srd(SW)}, 0 offen sc1")
    a.e("s_add_u32 s66, s66, L_exit3-L_exit2\ns_addc_u32 s67, s67, 0\ns_mov_b32 s48, 1\ns_branch L_loop")
    a.label("L_exit3")
    spin_until(a, "L_wf", "v28", SW, "v[26:27]", "v_cmp_ne_u64 vcc, v[24:25], v[26:27]\ns_nop 1")
    NE = cfg.early * (7 - cfg.tpoll)
    assert NE <= 10
    if NE:
        def ex():
            a.e("s_mov_b32 m0, s81\ns_add_u32 s81, s81, 1024")
            a.vm(f"buffer_load_dwordx4 v{LO}, {srd(SW)}, s78 offen sc1 lds", {'P'})
            a.e("s_add_u32 s78, s78, 1024\ns_cmp_eq_u32 s78, s100\ns_cselect_b32 s78, s101, s78")
        a.e(f"s_mov_b32 s48, {7-cfg.tpoll}")
        a.label("L_loop2")
        a.vq = [{'P'}] * 10
        body(a, 'mid', dma_ops(a, 'N'), True, {'P'}, extra={(0, k): ex for k in range(cfg.early)}, nord0=cfg.early)
        a.e("s_sub_u32 s48, s48, 1\ns_cmp_lg_u32 s48, 0\ns_cbranch_scc1 L_loop2")
        take(NE)
        if NE % 5: f8.q.insert(0, f"s_mul_i32 s78, s{SK[NE//5]}, 5\ns_add_u32 s78, s78, s77")
    elif cfg.tpoll < 7:
        a.e(f"s_add_u32 s66, s66, L_exit4-L_exit3\ns_addc_u32 s67, s67, 0\ns_mov_b32 s48, {7-cfg.tpoll}\ns_branch L_loop")
        a.label("L_exit4")
    def erd(n): return lambda: a.lds(f"ds_read_b128 {R('a',4*n,4)}, v99 offset:{1024*n}", regs('a', 4*n, 4))
    ex8 = {}
    for n in range(NE): ex8[(n // 2, 4 + n % 2) if n < 8 else (n - 8, 3)] = erd(n)
    stamp(a, 3)
    a.vq = [{'P'}] * 10
    body(a, 'mid', take(cfg.n8), False, {'P'}, fill=f8, extra=ex8)
    body(a, 'last', take(cfg.n9), False, None, fill=f9)
    for (i, jm) in [(0,0),(1,0),(2,0),(0,1),(1,1),(2,1)]: p1_mfma(a, 1, i, jm)
    a.e("s_nop 6")
    stamp(a, 4)
    def hstore(b, P):
        i, jm = b % 3, b // 3
        a.vm(f"buffer_store_dwordx4 {R('v',P,4)}, v19, {srd(SW)}, s{52+jm} offen offset:{512*i}{cfg.hsc}", {'HS%d' % jm})
    gelu_all(a, take(cfg.ng), hstore)
    stamp(a, 5)
    CMP = "v_cmp_ne_u64 vcc, v[24:25], v[26:27]\ns_nop 1"
    if cfg.two:
        a.need({'HS0'})
        a.vm(f"buffer_store_dwordx2 v[24:25], v{VHF_ST}, {srd(SW)}, 0 offen sc1")
        stamp(a, 6)
        for f in take(cfg.na): f()
        a.vm(f"buffer_load_dwordx2 v[26:27], v{VHF_PL}, {srd(SW)}, 0 offen sc1", {'HF'})
        for f in take(cfg.nb): f()
        a.need({'HS1'})
        a.vm(f"buffer_store_dwordx2 v[24:25], v{VHF_ST}, {srd(SW)}, s79 offen sc1")
    else:
        for f in take(cfg.na): f()
        a.need({'HS0', 'HS1'})
        a.vm(f"buffer_store_dwordx2 v[24:25], v{VHF_ST}, {srd(SW)}, 0 offen sc1")
        stamp(a, 6)
        for f in take(cfg.nb): f()
        a.vm(f"buffer_load_dwordx2 v[26:27], v{VHF_PL}, {srd(SW)}, 0 offen sc1", {'HF'})
        for f in take(cfg.nc): f()
    a.need({'HF'})
    stamp(a, 7)
    spin_until(a, "L_hf", f"v{VHF_PL}", SW, "v[26:27]", CMP)
    stamp(a, 8)
    if cfg.stamps: a.e("s_mov_b32 s80, s83")
    def lh(n):
        q, s = n // 12, n % 12
        d = HR + 4 * s
        def f():
            a.e(f"s_add_u32 s61, s{68+q}, s{SK[s]}")
            a.vm(f"buffer_load_dwordx4 {R('v',d,4)}, v{LO}, {srd(SW)}, s61 offen sc1", regs('v', d, 4))
        return f
    first_w = 60 - len(wl)
    loads = []; hidx = {}
    for n in range(48):
        if n < 12:
            for b in range(5):
                if 5 * n + b >= first_w: loads.append(wl.pop(0))
        hidx[n] = len(loads); loads.append(lh(n))
    pos = 0
    def issue_upto(k):
        nonlocal pos
        while pos <= min(k, len(loads) - 1): loads[pos](); pos += 1
    issue_upto(min(hidx[0] + cfg.ahead, hidx[cfg.ahead - 1]))
    def reduce_ops(q, packed):
        B0 = (q % 2) * PB
        rd = [(lambda w=w, h=h: a.lds(f"ds_read_b128 {R('v',PART+8*w+4*h,4)}, v97 offset:{B0+w*16*RS+16*h}", regs('v', PART+8*w+4*h, 4))) for w in range(4) for h in range(2)]
        ad = []
        for (x, y) in ((0, 1), (2, 3), (0, 2)):
            if packed:
                for e in range(0, 8, 2):
                    ad.append(lambda x=x, y=y, e=e: (a.need(regs('v', PART+8*x+e, 2) | regs('v', PART+8*y+e, 2)), a.e(f"v_pk_add_f32 {R('v',PART+8*x+e,2)}, {R('v',PART+8*x+e,2)}, {R('v',PART+8*y+e,2)}")))
            else:
                for e in range(8):
                    ad.append(lambda x=x, y=y, e=e: (a.need({('v', PART+8*x+e), ('v', PART+8*y+e)}), a.e(f"v_add_f32 v{PART+8*x+e}, v{PART+8*x+e}, v{PART+8*y+e}")))
        cv = [(lambda e=e: a.e(f"v_cvt_pk_bf16_f32 v{OPK+e}, v{PART+2*e}, v{PART+2*e+1}")) for e in range(4)]
        def st():
            a.vm(f"buffer_store_dwordx4 {R('v',OPK,4)}, v98, {srd(SO)}, s{4+q} offen{cfg.outsc}")
        return rd, ad, cv, st
    def pwrite(q, b):
        a.lds(f"ds_write_b128 v96, {R('v',ACC2[q%2]+4*b,4)} offset:{(q%2)*PB+64*b}", {'PW'})
    def mm(n, b):
        q, s = n // 12, n % 12
        C = ACC2[q % 2]; A = (s * 5 + b) * 4; B = HR + 4 * s
        a.need(regs('v', B, 4) | regs('a', A, 4))
        a.e(f"v_mfma_f32_16x16x32_bf16 {R('v',C+4*b,4)}, {R('a',A,4)}, {R('v',B,4)}, {'0' if s == 0 else R('v',C+4*b,4)}")
    def red_gap(q, k, b):
        if k in (9, 13, 17, 20, 24): pwrite(q - 1, (9, 13, 17, 20, 24).index(k))
        if k == 27: a.need({'PW'}); a.e("s_barrier")
        if 28 <= k < 38 and b != 1: rd.pop(0)()
        if k >= 38 and ad:
            ad.pop(0)()
            if b in (2, 3) and ad: ad.pop(0)()
        elif k >= 38 and cv: cv.pop(0)()
        elif k >= 38 and stq: stq.pop(0)()
    NT = 48 - cfg.tailb
    for n in range(NT):
        q, s = n // 12, n % 12
        if n == 1 and not cfg.fine2: stamp(a, 9)
        if cfg.fine2 and n % 4 == 0: a.e(f"s_memtime s[{FP[n//4]}:{FP[n//4]+1}]")
        if q > 0 and s == 0:
            rd, ad, cv, st = reduce_ops(q - 1, False); stq = [st]
        if cfg.two and n == 24 - cfg.ahead:
            a.need({'HF2'})
            spin_until(a, "L_hg", f"v{VHF_PL}", SW, "v[26:27]", CMP, soff="s79")
        for b in range(5):
            mm(n, b)
            if n + cfg.ahead < 48:
                tgt = min(hidx[n + cfg.ahead], hidx[n + 1] + cfg.ahead + 1)
                rem = tgt + 1 - pos
                k = -(-rem // (5 - b)) if rem > 0 else 0
                if b >= 1 or rem > 1: issue_upto(pos + k - 1)
            if cfg.two and n == 24 - cfg.ahead - cfg.pb and b == 3:
                a.vm(f"buffer_load_dwordx2 v[26:27], v{VHF_PL}, {srd(SW)}, s79 offen sc1", {'HF2'})
            if q > 0 and not cfg.nored: red_gap(q, 5 * s + b, b)
        if q > 0 and s == 11:
            assert not (rd or ad or cv or stq), (len(rd), len(ad), len(cv), len(stq))
    if cfg.fine2 and cfg.tailb == 4: a.e(f"s_memtime s[{FP[11]}:{FP[11]+1}]")
    k = 5 * (12 - cfg.tailb); done = 0
    for b in range(5):
        for j, n in enumerate(range(NT, 48)):
            mm(n, b)
            red_gap(3, k, k % 5); k += 1
            if b >= 2 and j == 1 and cfg.tailb >= 4: pwrite(3, done); done += 1
    while ad or cv or stq: red_gap(3, 59, 2)
    assert pos == len(loads), (pos, len(loads))
    if cfg.fine2: a.e(f"s_memtime s[{FP[12]}:{FP[12]+1}]")
    stamp(a, 10)
    if done == 0: a.e("s_nop 3")
    for b in range(done, 5):
        if b == 4 and done: a.e("s_nop 6")
        pwrite(3, b)
    a.need({'PW'}); a.e("s_barrier")
    rd, ad, cv, st = reduce_ops(3, True)
    for f in rd + ad + cv: f()
    st()
    dump_stamps(a, 12)
    if cfg.fine2:
        a.e("v_add_u32 v31, 0x40000, v31")
        for k in range(13): a.e(f"v_mov_b32 v30, s{FP[k]}\nbuffer_store_dword v30, v31, {srd(SW)}, 0 offen offset:{4*k}\ns_nop 1")
    a.label("L_end")
    a.e("s_endpgm")
    return a.text()

HEADER = """; GEGLU MLP, one launch:  out = (gelu_tanh(x Wg) * (x Wu)) Wd   x[2048,640] Wg,Wu[640,1536] Wd[1536,640] bf16
; @launch grid=(256,1,1) block=(256,1,1) lds=%d
.amdgcn_target "amdgcn-amd-amdhsa--gfx950"
.text
.globl %s_kernel
.p2align 8
.type %s_kernel,@function
%s_kernel:
"""
FOOTER = """.section .rodata,"a"
.p2align 6
.amdhsa_kernel %s_kernel
  .amdhsa_next_free_vgpr 512
  .amdhsa_next_free_sgpr 102
  .amdhsa_accum_offset 256
  .amdhsa_group_segment_fixed_size 0
  .amdhsa_kernarg_size 56
  .amdhsa_user_sgpr_count 2
  .amdhsa_user_sgpr_kernarg_segment_ptr 1
  .amdhsa_system_sgpr_workgroup_id_x 1
  .amdhsa_float_denorm_mode_32 3
.end_amdhsa_kernel
"""
if __name__ == "__main__":
    out = sys.argv[1]
    for kv in sys.argv[2:]:
        k, v = kv.split("=")
        assert hasattr(cfg, k), k
        setattr(cfg, k, (int(v) if v.lstrip('-').isdigit() else v.replace("_", " ")))
    open(out, "w").write(HEADER % ((4*STAGE if cfg.early else 3*STAGE+4*3072), NAME, NAME, NAME) + kernel() + FOOTER % NAME)
```

```python
import math, sys, os
from asmlib import *

NAME = "standalone__glu_gated_geglu__prompt"
H_OFF, WD_OFF, FW_OFF, FH_OFF, ST_OFF, WS_BYTES = 0, 0x600000, 0x7E0000, 0x7F0000, 0x800000, 0x900000
OOB = 0x40000000
STAGE = 40960
K0 = -2.0 * math.log2(math.e) * math.sqrt(2.0 / math.pi)
K1 = K0 * 0.044715
SX, SG_, SU, SD, SW, SO, SDBG = 8, 12, 16, 20, 24, 28, 32
def srd(n): return f"s[{n}:{n+3}]"

class Cfg:
    stamps = 0; fine2 = 0; pro = 0
    rot = "xcd"; ftmap = 0; p2map = 1; rho = 0; half = 1; pwk = "3,5,7,9,10,12,14,15,17,19"; kbar = 22; w64 = 1; add2 = 0
    n8 = 5; n9 = 10; nl = 0; ng = 14; na = 24; nb = 4; gapper = 3
    stp = "3,5,7,9,11,12"
    ahead = 8; pb = 8; spin = 100000; psleep = 0; hsc = " sc1"; outsc = " sc1"
    t1gap = 8; cpf = 0; pre = 100; bar = 4; wst = 0
cfg = Cfg()

STV = 136
def stamp(a, i):
    if cfg.stamps:
        a.e(f"s_memrealtime s[84:85]\ns_memtime s[86:87]\ns_waitcnt lgkmcnt(0)\nv_mov_b32 v{STV+2*i}, s84\nv_mov_b32 v{STV+1+2*i}, s86")
        a.lq = []
def dump_stamps(a, n):
    if not cfg.stamps: return
    a.e("s_waitcnt vmcnt(0)")
    stamp(a, n - 1)
    a.e(f"s_lshl_b32 s82, s2, 2\ns_add_u32 s82, s82, s36\ns_lshl_b32 s82, s82, 7\ns_add_u32 s82, s82, {ST_OFF}\nv_mov_b32 v31, s82\ns_mov_b64 exec, 1\nv_mov_b32 v30, s80\nbuffer_store_dword v30, v31, {srd(SW)}, 0 offen offset:96")
    for i in range(0, 2 * n, 2):
        a.e(f"buffer_store_dwordx2 v[{STV+i}:{STV+i+1}], v31, {srd(SW)}, 0 offen offset:{4*i}")

ACC = 160
FP = [8,10,12,14,16,18,20,22,40,42,44,46,48]
LO = 130; VHF_ST = 134; VHF_PL = 135
def acc(i, jm): return ACC + 16 * (2 * i + jm)

class Fill:
    def __init__(self, a, text=""):
        self.a = a; self.q = []
        self.add(text)
    def add(self, text):
        for l in text.split("\n"):
            l = l.strip()
            if l: self.q.append(l.replace("|", "\n"))
    def emit(self, n):
        while n > 0 and self.q:
            c = self.q.pop(0); self.a.e(c); n -= c.count("\n") + 1
    def flush(self): self.emit(1 << 30)

XF = [32, 48]; AF = 64
def accr(k, j):
    return ACC + 16 * (2 * (k // 2) + j // 2) + 8 * (k % 2) + 4 * (j % 2)
def rd_x(a, s, j):
    d = XF[s] + 4 * j
    return lambda: a.lds(f"ds_read_b128 {R('v',d,4)}, v{12+s} offset:{2048*j}", regs('v', d, 4))
def rd_a(a, s, k, h):
    d = AF + 4 * k + 2 * h
    return lambda: a.lds(f"ds_read_b64_tr_b16 {R('v',d,2)}, v{16+k//2} offset:{16384+12288*(k%2)+(32*s+4*h)*192}", regs('v', d, 2))
def p1_mfma(a, s, k, j, first=False):
    A = AF + 4 * k; B = XF[s] + 4 * j; D = accr(k, j)
    a.need(regs('v', A, 4) | regs('v', B, 4))
    a.e(f"v_mfma_f32_16x16x32_bf16 {R('v',D,4)}, {R('v',A,4)}, {R('v',B,4)}, {'0' if first else R('v',D,4)}")

def dma_ops(a, tag, split=False):
    ops = []
    def mk(m0src, v, sr, so, off):
        def f():
            if m0src is not None and not split:
                a.e(f"s_add_u32 m0, s42, s{m0src}\ns_nop 0")
            a.vm(f"buffer_load_dwordx4 v{v}, {srd(sr)}, s{so} offen offset:{off} lds", {tag})
        if m0src is not None and split:
            g = lambda: a.e(f"s_add_u32 m0, s42, s{m0src}")
            g.salu = True; ops.append(g)
        return f
    for i in range(4): ops.append(mk(43 if i == 0 else None, 2 + i, SX, 40, 1024 * i))
    for i in range(3): ops.append(mk(44 if i == 0 else None, 6 + i, SG_, 41, 1024 * i))
    for i in range(3): ops.append(mk(45 if i == 0 else None, 6 + i, SU, 41, 1024 * i))
    return ops
def dma_advance(a):
    a.e("s_add_u32 s40, s40, 128\ns_add_u32 s41, s41, 196608\ns_cmp_eq_u32 s40, s55\ns_cselect_b32 s40, s50, s40\ns_cselect_b32 s41, s51, s41")
    a.e(f"s_add_u32 s42, s42, {STAGE}\ns_cmp_eq_u32 s42, {3*STAGE}\ns_cselect_b32 s42, 0, s42")
def rd_advance_s(a):
    a.e(f"s_add_u32 s46, s46, {STAGE}\ns_cmp_eq_u32 s46, {3*STAGE}\ns_cselect_b32 s47, {(-2*STAGE) & 0xffffffff:#x}, s49\ns_cselect_b32 s46, 0, s46")

SNAKE = [(k, j if k % 2 == 0 else 3 - j) for k in range(6) for j in range(4)]
def body(a, t_kind, vmops, is_dma, wait_tag, extra=(), fill=None, pre_bar=None):
    BAR = cfg.bar
    slots = [(1, g) for g in range(BAR, 24)] + [(0, g) for g in range(24)] + [(2, g) for g in range(BAR)]
    if t_kind == 'last': slots = slots[:48 - BAR]
    plan = {p: [] for p in slots}
    def cnt(p, t): return sum(c for _, tt, c in plan[p] if tt == t)
    def fits(p, t, c):
        m, v, sc = cnt(p, 'm'), cnt(p, 'v'), cnt(p, 's')
        if p[1] in (23, 11, 19) : sc += 1
        if t == 'm': return m == 0 and v <= 1 and m + v + sc + 1 <= 3
        if t == 'v': return v + c <= (1 if m else 2) and m + v + sc + c <= 3
        return m + v + sc + c <= 3 or (c >= 3 and m + v + sc == 0)
    def place(f, lo, t='m', c=1):
        for n in range(lo, len(slots)):
            if fits(slots[n], t, c): plan[slots[n]].append((f, t, c)); return n
        assert t_kind == 'last' or t != 'm', "no room"
        plan[slots[-1]].append((f, t, c)); return len(slots) - 1
    idx = {p: n for n, p in enumerate(slots)}
    for (seg, s) in ((1, 0), (0, 1)):
        base = idx[(seg, BAR if seg == 1 else 0)]; g0 = BAR if seg == 1 else 0
        for k in range(6):
            lo = base + max(0, 4 * k + 3 - g0)
            n = place(rd_a(a, s, k, 0), lo); place(rd_a(a, s, k, 1), n)
        lo = base
        for j in range(4): lo = place(rd_x(a, s, j), lo) + 1
    last_rd = max(n for n, p in enumerate(slots) if plan[p])
    lo = 0
    if t_kind == 'first':
        for f in extra: plan[slots[23 - BAR - 6]].append((f, 'x', 0))
        lo = 23 - BAR - 5
    else:
        for f in extra: lo = place(f, lo) + 1
    if vmops:
        nv = len(vmops)
        span = 0 if is_dma else min(len(slots) - 1, int(nv * cfg.gapper * 2))
        start = lo if is_dma else len(slots) - 1 - span
        p = start; pend = None
        for k, f in enumerate(vmops):
            if getattr(f, 'salu', False): pend = f; continue
            q = place(f, max(p + (1 if pend else 0), start + (k * span) // nv))
            if pend:
                for n in range(q - 1, p - 2, -1):
                    if n < p or fits(slots[n], 's', 1): plan[slots[max(n, p - 1, 0)]].append((pend, 's', 1)); break
                pend = None
            p = q + 1
        lo = p
    if t_kind != 'last':
        f46 = lambda: a.e(f"s_add_u32 s46, s46, {STAGE}\ns_cmp_eq_u32 s46, {3*STAGE}")
        f46.scc = True
        n = place(f46, 2, 's', 2)
        plan[slots[n + 1]].insert(0, (lambda: a.e(f"s_cselect_b32 s47, {(-2*STAGE) & 0xffffffff:#x}, s49\ns_cselect_b32 s46, 0, s46"), 's', 2))
        p = last_rd - 24
        for v in (12,): p = place(lambda v=v: a.e(f"v_add_u32 v{v}, s47, v{v}"), p, 'v')
        p = last_rd - 12
        for v in (13, 16): p = place(lambda v=v: a.e(f"v_add_u32 v{v}, s47, v{v}"), p, 'v')
        place(lambda: a.e("v_add_u32 v17, s47, v17"), last_rd - 6, 'v')
        place(lambda: a.e("v_add_u32 v18, s47, v18"), last_rd + 1, 'v')
        if is_dma:
            n = place(lambda: a.e("s_add_u32 s40, s40, 128\ns_add_u32 s41, s41, 196608"), lo, 's', 2)
            n = place(lambda: a.e("s_cmp_eq_u32 s40, s55\ns_cselect_b32 s40, s50, s40\ns_cselect_b32 s41, s51, s41"), n + 1, 's', 3)
            place(lambda: a.e(f"s_add_u32 s42, s42, {STAGE}\ns_cmp_eq_u32 s42, {3*STAGE}\ns_cselect_b32 s42, 0, s42"), lo, 's', 3)
    for (seg, g) in slots:
        k, j = SNAKE[g]
        has_m = not (seg == 1 and t_kind == 'first')
        s = 0 if seg == 0 else 1
        if has_m:
            if g == 0: a.need(regs('v', XF[s], 16) | regs('v', AF, 12))
            if g == 12: a.need(regs('v', AF + 12, 8))
            p1_mfma(a, s, k, j, first=(t_kind == 'first' and seg == 0))
        for f, t, c in plan[(seg, g)]:
            f()
            if not has_m and getattr(f, 'salu', False): a.e('s_nop 0')
        while fill and has_m and fill.q:
            x = fill.q[0]; t = 'v' if x.startswith('v_') else 's'; c = x.count("\n") + 1
            if any(getattr(ff, 'scc', False) for ff, _, _ in plan[(seg, g)]) or not fits((seg, g), t, c): break
            plan[(seg, g)].append((None, t, c)); fill.emit(1)
    if fill: fill.flush()
    if t_kind != 'last':
        if pre_bar: a.e(pre_bar)
        l = a._cnt(a.vq, wait_tag)
        a.wait(vm=len(a.vq) - l - 1, lgkm=0)
        a.e("s_barrier")

def gelu_all(a, vm_ops, store, stp):
    blocks = [(i, jm) for jm in range(2) for i in range(3)]
    def T(b): return 88 - 56 + 0 + 8 * (b % 2)
    def P(b): return [112, 116, 120, 124, 88, 92][b]
    def pk(op, d, x, y, z=None, mod=""):
        return f"v_pk_{op}_f32 {R('v',d,2)}, {x}, {y}" + (f", {z}" if z else "") + mod
    def S1(b):
        A = acc(*blocks[b]); t = T(b)
        return ([pk("mul", t+2*p, R('v',A+2*p,2), R('v',A+2*p,2)) for p in range(4)] +
                [pk("fma", t+2*p, R('v',t+2*p,2), "v[20:21]", "v[22:23]") for p in range(4)] +
                [pk("mul", t+2*p, R('v',t+2*p,2), R('v',A+2*p,2)) for p in range(4)])
    def S3(b):
        A = acc(*blocks[b]); t = T(b)
        return ([pk("mul", t+2*p, R('v',t+2*p,2), R('v',A+2*p,2)) for p in range(4)] +
                [pk("mul", t+2*p, R('v',t+2*p,2), R('v',A+8+2*p,2)) for p in range(4)] +
                [f"v_cvt_pk_bf16_f32 v{P(b)+p}, v{t+2*p}, v{t+2*p+1}" for p in (0, 2, 1, 3)])
    vm_ops = list(vm_ops); nv = len(vm_ops); ph = [0]
    def vm_slot():
        ph[0] += 1
        for b in range(6):
            if stp[b] == ph[0] and b < 5: store(b, P(b))
        want = (ph[0] * nv + 11) // 12
        while nv - len(vm_ops) < want and vm_ops: vm_ops.pop(0)()
    for l in S1(0): a.e(l)
    for b in range(6):
        t = T(b)
        other = S3(b - 1) if b > 0 else []
        k = 0
        for r in range(8):
            a.e(f"v_exp_f32 v{t+r}, v{t+r}")
            for _ in range(2 if r < 4 else 1):
                if k < len(other): a.e(other[k]); k += 1
            if r >= 4:
                p = r - 4 if r < 7 else None
                if r == 4 and b > 0: pass
                a.e(pk("add", t+2*(r-4), R('v',t+2*(r-4),2), "1.0", mod=" op_sel_hi:[1,0]")) if r < 7 else None
        if b > 0: a.e(f"v_permlane32_swap_b32 v{P(b-1)}, v{P(b-1)+2}")
        else: a.e("s_nop 0")
        a.e(pk("add", t+6, R('v',t+6,2), "1.0", mod=" op_sel_hi:[1,0]"))
        if b > 0:
            a.e(f"v_permlane32_swap_b32 v{P(b-1)+1}, v{P(b-1)+3}")
        vm_slot()
        other = S1(b + 1) if b < 5 else []
        k = 0
        for r in range(8):
            a.e(f"v_rcp_f32 v{t+r}, v{t+r}")
            for _ in range(2 if r < 4 else 1):
                if k < len(other): a.e(other[k]); k += 1
        vm_slot()
    for l in S3(5): a.e(l)
    a.e(f"v_permlane32_swap_b32 v{P(5)}, v{P(5)+2}\ns_nop 0\nv_permlane32_swap_b32 v{P(5)+1}, v{P(5)+3}")
    if stp[5] == 12: store(5, P(5))
    return P

def spin_until(a, lab, voff, sr, data, cmp, soff=0):
    a.e(cmp)
    a.e(f"s_mov_b32 s83, {cfg.spin}\ns_cbranch_vccz {lab}_ok")
    a.label(f"{lab}_spin")
    if cfg.psleep: a.e(f"s_sleep {cfg.psleep}")
    a.e(f"buffer_load_dwordx2 {data}, {voff}, {srd(sr)}, {soff} offen sc1\ns_waitcnt vmcnt(0)")
    a.e(cmp)
    a.e(f"s_sub_u32 s83, s83, 1\ns_cbranch_vccz {lab}_ok\ns_cmp_lg_u32 s83, 0\ns_cbranch_scc1 {lab}_spin")
    a.label(f"{lab}_ok")

P2L = STAGE
HR = 160; ACC2 = [32, 52]; PART = 208; OPK = 240; RS = 336; PB = 4 * 16 * RS

def div_rows(src, q, r, tmp, magic, sh, d):
    return f"v_mul_u32_u24 {q}, {magic}, {src}\nv_lshrrev_b32 {q}, {sh}, {q}\nv_mul_u32_u24 {tmp}, {d}, {q}\nv_sub_u32 {r}, {src}, {tmp}"

def kernel():
    a = Asm()
    a.e("s_cmp_ge_u32 s2, 256\ns_cbranch_scc1 L_end")
    if cfg.pro: a.e("s_memtime s[88:89]\ns_memrealtime s[90:91]")
    for n, off in ((SX, 0), (SG_, 8), (SU, 16), (SD, 24), (SW, 48), (SDBG, 40), (SO, 32)):
        a.e(f"s_load_dwordx2 s[{n}:{n+1}], s[0:1], {off}")
    a.e("v_lshrrev_b32 v107, 6, v0\nv_and_b32 v1, 63, v0\nv_readfirstlane_b32 s36, v107")
    def srd_tail(n, size): a.e(f"s_mov_b32 s{n+2}, {size}\ns_mov_b32 s{n+3}, 0x20000")
    srd_tail(SX, 2048*640*2)
    a.c("x DMA voffsets v2..v5: row = 32*wave + 8*i + lane/8, chunk = (lane&7) ^ ((row>>1)&7)")
    a.e(f"""v_lshrrev_b32 v108, 3, v1
      v_lshl_add_u32 v108, v107, 5, v108
      v_mul_u32_u24 v108, 1280, v108
      v_lshrrev_b32 v109, 4, v1
      v_and_b32 v110, 7, v1
      v_xor_b32 v109, v110, v109
      v_lshl_add_u32 v2, v109, 4, v108
      v_xor_b32 v109, 4, v109
      v_lshl_add_u32 v3, v109, 4, v108
      v_add_u32 v4, {2*9216}, v2
      v_add_u32 v3, 9216, v3
      v_add_u32 v5, {2*9216}, v3""")
    a.c("decode: s39 xcd, s54 idx, s37 m-tile, s38 f-tile, s59 first k-tile")
    a.e("s_and_b32 s39, s2, 7\ns_lshr_b32 s54, s2, 3")
    if cfg.ftmap == 2:
        a.e("s_lshr_b32 s60, s54, 4\ns_lshl_b32 s37, s39, 1\ns_add_u32 s37, s37, s60\ns_and_b32 s38, s54, 15")
    elif cfg.ftmap == 3:
        a.e("s_lshr_b32 s60, s54, 3\ns_and_b32 s37, s39, 6\ns_lshl_b32 s37, s37, 1\ns_add_u32 s37, s37, s60\ns_and_b32 s38, s39, 1\ns_lshl_b32 s38, s38, 3\ns_and_b32 s61, s54, 7\ns_add_u32 s38, s38, s61")
    else:
        a.e("s_lshr_b32 s60, s54, 2\ns_and_b32 s61, s54, 3\ns_and_b32 s37, s39, 4\ns_lshl_b32 s37, s37, 1\ns_add_u32 s37, s37, s60\ns_and_b32 s38, s39, 3")
        a.e("s_lshl_b32 s62, s61, 2\ns_add_u32 s38, s38, s62" if cfg.ftmap else "s_lshl_b32 s38, s38, 2\ns_add_u32 s38, s38, s61")
    K0R = {"xcd": "s39", "none": "0"}[cfg.rot]
    a.e(f"""s_mul_i32 s50, s37, {128*1280}
      s_lshl_b32 s40, {K0R}, 7
      s_add_u32 s40, s40, s50
      s_lshl_b32 s43, s36, 12
      s_mov_b32 m0, s43""")
    wset = Fill(a, f"""s_mul_i32 s51, s38, 192
      s_mul_i32 s41, {K0R}, 196608
      s_add_u32 s41, s41, s51
      s_mul_i32 s44, s36, 3072
      s_add_u32 s45, s44, 28672
      s_add_u32 s44, s44, 16384
      s_mov_b32 s{SG_+2}, {640*1536*2}
      s_mov_b32 s{SG_+3}, 0x20000
      s_mov_b32 s{SU+2}, {640*1536*2}
      s_mov_b32 s{SU+3}, 0x20000
      v_mul_u32_u24 v107, 49152, v107""")
    for i in range(3):
        src = "v1"
        if i: wset.add(f"v_add_u32 v31, {64*i}, v1"); src = "v31"
        wset.add(div_rows(src, "v108", "v109", "v109", 43691, 19, 12))
        wset.add(f"v_lshrrev_b32 v110, 2, v108\nv_and_b32 v110, 2, v110\nv_xor_b32 v109, v109, v110")
        wset.add(f"v_mul_u32_u24 v108, 3072, v108\nv_add_u32 v108, v107, v108")
        if i: wset.add(f"v_subrev_u32 v108, {1024*i}, v108")
        wset.add(f"v_lshl_add_u32 v{6+i}, v109, 4, v108")
    wset.emit(cfg.pre)
    a.e("s_waitcnt lgkmcnt(0)")
    stamp(a, 0)
    for i in range(4):
        a.vm(f"buffer_load_dwordx4 v{2+i}, {srd(SX)}, s40 offen offset:{1024*i} lds", {'T0'})
        wset.emit(10)
    wset.flush()
    a.e("s_mov_b32 m0, s44\ns_mov_b32 s42, 0")
    for i in range(3): a.vm(f"buffer_load_dwordx4 v{6+i}, {srd(SG_)}, s41 offen offset:{1024*i} lds", {'T0'})
    a.e("s_mov_b32 m0, s45\ns_add_u32 s55, s50, 1280")
    for i in range(3): a.vm(f"buffer_load_dwordx4 v{6+i}, {srd(SU)}, s41 offen offset:{1024*i} lds", {'T0'})
    dma_advance(a)
    srd_tail(SDBG, 256)
    a.c("launch tag: workgroup 0 / wave 3 publishes the real-time counter in d_debug")
    a.e("v_mov_b32 v30, 0\ns_lshl_b32 s60, s2, 2\ns_add_u32 s60, s60, s36\ns_cmp_lg_u32 s60, 3\ns_cbranch_scc1 L_notag")
    a.e(f"s_memrealtime s[60:61]\ns_waitcnt lgkmcnt(0)\ns_or_b32 s61, s61, 0x80000000\nv_mov_b32 v24, s60\nv_mov_b32 v25, s61\nbuffer_store_dwordx2 v[24:25], v30, {srd(SDBG)}, 0 offen sc1")
    a.label("L_notag")
    if cfg.cpf:
        a.c("pull the rest of this kernel's code into L2")
        a.e(f"s_getpc_b64 s[56:57]\ns_mov_b32 s58, {cfg.cpf*1024}\ns_mov_b32 s59, 0x20000\nv_lshlrev_b32 v31, 7, v0")
        a.vm("buffer_load_dword v111, v31, s[56:59], 0 offen", {"T0"})
    if cfg.pro:
        a.e("s_memtime s[68:69]")
        for k, n in enumerate((12, 9, 6, 3, 0)): a.e(f"s_waitcnt vmcnt({n})\ns_memtime s[{70+2*k}:{71+2*k}]")
        a.e("s_waitcnt lgkmcnt(0)")
        a.e(f"s_lshl_b32 s82, s2, 2\ns_add_u32 s82, s82, s36\ns_lshl_b32 s82, s82, 7\ns_add_u32 s82, s82, {ST_OFF+0x40000}\nv_mov_b32 v31, s82\ns_mov_b64 exec, 1")
        for k, r in enumerate((88, 86, 68, 70, 72, 74, 76, 78, 90)): a.e(f"v_mov_b32 v30, s{r}\nbuffer_store_dword v30, v31, {srd(SW)}, 0 offen offset:{4*k}\ns_nop 1")
        a.label("L_end"); a.e("s_endpgm")
        return a.text()
    f1 = Fill(a, f"""s_mov_b32 s46, 0
      s_mov_b32 s49, {STAGE}
      s_mov_b32 s{SD+2}, {1536*640*2}
      s_mov_b32 s{SD+3}, 0x20000
      s_mov_b32 s{SW+2}, {WS_BYTES}
      s_mov_b32 s{SW+3}, 0x20000
      s_mov_b32 s{SO+2}, {2048*640*2}
      s_mov_b32 s{SO+3}, 0x20000
      s_mul_i32 s58, s54, 3
      s_add_u32 s58, s58, s36
      s_mul_i32 s56, s58, {16*1280}
      s_mul_i32 s60, s39, 160
      s_add_u32 s56, s56, s60
      s_cmp_eq_u32 s36, 3|s_cselect_b32 s61, {OOB:#x}, 0
      s_add_u32 s56, s56, s61
      v_cmp_gt_u32 vcc, 32, v1
      s_mul_i32 s62, s36, 3072
      s_add_u32 s62, s62, {3*STAGE}""")
    for i in range(3):
        src = "v1"
        if i: f1.add(f"v_add_u32 v31, {64*i}, v1"); src = "v31"
        f1.add(div_rows(src, "v108", "v109", "v109", 6554, 16, 10))
        f1.add(f"v_mul_u32_u24 v108, 1280, v108\nv_lshl_add_u32 v{112+i}, v109, 4, v108")
        if i: f1.add(f"v_subrev_u32 v{112+i}, {1024*i}, v{112+i}")
    f1.add(f"v_mov_b32 v31, {OOB:#x}\nv_cndmask_b32 v114, v31, v114, vcc")
    f1.add(f"""s_lshr_b32 s63, s36, 1
      s_and_b32 s64, s36, 1
      v_and_b32 v107, 15, v1
      v_lshrrev_b32 v108, 4, v1
      v_bfe_u32 v109, v1, 1, 3
      v_xor_b32 v109, v109, v108
      s_lshl_b32 s65, s63, 13
      v_lshlrev_b32 v110, 7, v107
      v_add_u32 v110, s65, v110
      v_lshl_add_u32 v12, v109, 4, v110
      v_xor_b32 v31, 4, v109
      v_lshl_add_u32 v13, v31, 4, v110
      v_bfe_u32 v110, v1, 4, 1
      v_bfe_u32 v109, v1, 2, 2
      v_lshl_add_u32 v31, v108, 3, v109
      v_mul_u32_u24 v31, 192, v31
      v_and_b32 v128, 3, v1
      v_lshl_add_u32 v31, v128, 3, v31
      s_mul_i32 s65, s64, 3
      v_xor_b32 v129, s65, v110
      v_lshl_add_u32 v16, v129, 5, v31
      s_add_u32 s60, s65, 1
      v_xor_b32 v129, s60, v110
      v_lshl_add_u32 v17, v129, 5, v31
      s_add_u32 s60, s65, 2
      v_xor_b32 v129, s60, v110
      v_lshl_add_u32 v18, v129, 5, v31
      v_and_b32 v107, 31, v1
      v_lshrrev_b32 v108, 5, v1
      v_lshl_add_u32 v31, v110, 2, v109
      v_mul_u32_u24 v31, 160, v31
      v_lshl_add_u32 v31, v108, 5, v31
      v_lshl_add_u32 v31, v128, 3, v31
      v_add_u32 v115, s62, v31""")
    for f in dma_ops(a, 'T1'):
        f1.emit(cfg.t1gap); f()
    dma_advance(a)
    f1.flush()
    stamp(a, 1)
    a.need({'T0'})
    a.e("s_barrier")
    stamp(a, 2)
    f0 = Fill(a, f"""s_lshr_b32 s59, s58, 1
      s_mul_i32 s59, s59, 5120
      s_and_b32 s60, s58, 1
      s_lshl_b32 s60, s60, 9
      s_add_u32 s59, s59, s60
      s_mul_i32 s60, s39, 245760
      s_add_u32 s59, s59, s60
      s_add_u32 s59, s59, s61
      s_add_u32 s59, s59, {WD_OFF}
      v_lshlrev_b32 v31, 4, v107
      v_lshl_add_u32 v31, v108, 10, v31
      v_add_u32 v128, s59, v31
      v_add_u32 v129, 4096, v128
      v_mov_b32 v31, {OOB:#x}
      v_cndmask_b32 v129, v31, v129, vcc
      s_mul_i32 s60, s39, 96
      s_add_u32 s60, s60, s58
      s_lshl_b32 s60, s60, 3
      s_add_u32 s60, s60, s61
      s_add_u32 s60, s60, {FW_OFF}
      v_mov_b32 v29, s60""")
    if cfg.p2map == 0:
        f0.add("s_lshr_b32 s88, s54, 3\ns_lshl_b32 s58, s39, 2\ns_add_u32 s88, s88, s58\ns_and_b32 s89, s54, 7")
    else:
        f0.add("s_lshr_b32 s88, s54, 2\ns_and_b32 s58, s39, 6\ns_lshl_b32 s58, s58, 2\ns_add_u32 s88, s88, s58\ns_and_b32 s89, s54, 3\ns_and_b32 s58, s39, 1\ns_lshl_b32 s58, s58, 2\ns_add_u32 s89, s89, s58")
    f0.add({0: "s_mov_b32 s90, 0", 1: "s_and_b32 s90, s89, 1"}[cfg.rho])
    f0.add("s_and_b32 s91, s88, 1\ns_mul_i32 s91, s91, 6" if cfg.half else "s_mov_b32 s91, 0")
    f0.add(f"""s_mul_i32 s58, s36, 12
      s_add_u32 s92, s58, s91
      s_xor_b32 s91, s91, 6
      s_add_u32 s93, s58, s91
      s_lshl_b32 s92, s92, 10
      s_lshl_b32 s93, s93, 10
      s_mul_i32 s77, s89, 245760
      s_add_u32 s77, s77, {WD_OFF}
      s_mul_i32 s94, s92, 5
      s_mul_i32 s95, s93, 5
      s_add_u32 s94, s94, s77
      s_add_u32 s95, s95, s77
      v_lshlrev_b32 v{LO}, 4, v1
      s_mul_i32 s60, s89, 96
      s_mul_i32 s61, s36, 24
      s_add_u32 s60, s60, s61
      s_lshl_b32 s60, s60, 3
      s_add_u32 s60, s60, {FW_OFF}
      v_min_u32 v107, 23, v1
      v_lshlrev_b32 v107, 3, v107
      v_add_u32 v28, s60, v107""")
    f8 = Fill(a, f"""v_lshrrev_b32 v107, 5, v1
      v_mul_u32_u24 v107, 49152, v107
      v_and_b32 v108, 31, v1
      v_lshl_add_u32 v19, v108, 4, v107
      s_lshl_b32 s52, s37, 3
      s_lshl_b32 s60, s63, 2
      s_add_u32 s52, s52, s60
      s_mul_i32 s52, s52, 49152
      s_mul_i32 s60, s38, 6
      s_add_u32 s60, s60, s65
      s_lshl_b32 s60, s60, 9
      s_add_u32 s52, s52, s60
      s_add_u32 s53, s52, {2*49152}
      s_lshl_b32 s60, s37, 1
      s_add_u32 s60, s60, s63
      s_lshl_b32 s60, s60, 2
      s_lshr_b32 s61, s38, 2
      s_add_u32 s60, s60, s61
      s_lshl_b32 s60, s60, 4
      s_and_b32 s61, s38, 3
      s_lshl_b32 s61, s61, 1
      s_add_u32 s60, s60, s61
      s_add_u32 s60, s60, s64
      s_lshl_b32 s60, s60, 3
      s_add_u32 s60, s60, {FH_OFF}
      v_mov_b32 v{VHF_ST}, s60
      s_lshl_b32 s60, s88, 2
      s_add_u32 s60, s60, s36
      s_lshl_b32 s60, s60, 7
      s_add_u32 s60, s60, {FH_OFF}
      v_and_b32 v107, 7, v1
      v_lshlrev_b32 v107, 3, v107
      v_add_u32 v{VHF_PL}, s60, v107
      s_mov_b32 s79, 0x4000
      v_mov_b32 v20, {f32hex(K1)}
      v_mov_b32 v21, {f32hex(K1)}
      v_mov_b32 v22, {f32hex(K0)}
      v_mov_b32 v23, {f32hex(K0)}""")
    f9 = Fill(a, f"""s_lshl_b32 s60, s88, 2
      s_add_u32 s61, s60, s90
      s_mul_i32 s68, s61, 49152
      s_mul_i32 s4, s61, {16*1280}
      s_xor_b32 s61, s61, 1
      s_mul_i32 s69, s61, 49152
      s_mul_i32 s5, s61, {16*1280}
      s_add_u32 s70, s68, {2*49152}
      s_add_u32 s71, s69, {2*49152}
      s_mul_i32 s62, s36, {16*RS}
      s_add_u32 s62, s62, {P2L}
      v_and_b32 v107, 15, v1
      v_mul_u32_u24 v107, {RS}, v107
      v_lshrrev_b32 v108, 4, v1
      v_lshl_add_u32 v107, v108, 4, v107
      v_add_u32 v96, s62, v107
      v_min_u32 v31, 39, v1
      """ + div_rows("v31", "v108", "v109", "v109", 6554, 16, 10) + f"""
      s_mul_i32 s62, s36, {4*RS}
      s_add_u32 s62, s62, {P2L}
      v_mul_u32_u24 v107, {RS}, v108
      v_lshl_add_u32 v107, v109, 5, v107
      v_add_u32 v97, s62, v107
      v_cmp_gt_u32 vcc, 40, v1
      v_mul_u32_u24 v108, 1280, v108
      v_lshl_add_u32 v98, v109, 4, v108
      v_mov_b32 v107, {OOB:#x}
      v_cndmask_b32 v98, v107, v98, vcc
      s_mul_i32 s72, s36, {4*1280}
      s_mul_i32 s60, s89, 160
      s_add_u32 s72, s72, s60
      s_add_u32 s4, s4, s72
      s_add_u32 s5, s5, s72
      s_add_u32 s6, s4, {32*1280}
      s_add_u32 s7, s5, {32*1280}""")

    def wr(i):
        def f():
            if i == 0: a.e("s_mov_b32 m0, s62\ns_nop 0")
            a.vm(f"buffer_load_dwordx4 v{112+i}, {srd(SD)}, s56 offen offset:{1024*i} lds", {'WR'})
        return f
    def ldtag(): a.vm(f"buffer_load_dwordx2 v[24:25], v30, {srd(SDBG)}, 0 offen sc1", {'TAG'})
    body(a, 'first', dma_ops(a, 'T2', True), True, {'T1'}, extra=[wr(0), wr(1), wr(2), ldtag], fill=f0)
    a.e("s_getpc_b64 s[66:67]")
    a.label("L_pc")
    a.e("s_add_u32 s66, s66, L_exit1-L_pc\ns_addc_u32 s67, s67, 0\ns_mov_b32 s48, 1")
    a.label("L_loop")
    a.vq = [{'P'}] * 10
    body(a, 'mid', dma_ops(a, 'N', True), True, {'P'}, pre_bar="s_sub_u32 s48, s48, 1\ns_cmp_lg_u32 s48, 0")
    a.e("s_cbranch_scc1 L_loop\ns_setpc_b64 s[66:67]")
    a.label("L_exit1")
    a.c("re-tile the raw Wd piece (landed: older than the tile waited for) and write it out")
    for o in range(3):
        for j in range(2):
            d = 116 + 4*o + 2*j
            a.lds(f"ds_read_b64_tr_b16 {R('v',d,2)}, v115 offset:{64*o+1280*j}", regs('v', d, 2))
    a.e("s_add_u32 s66, s66, L_exit1b-L_exit1\ns_addc_u32 s67, s67, 0\ns_mov_b32 s48, 1")
    for o in range(3):
        d = 116 + 4*o
        a.need(regs('v', d, 4))
        a.e(f"buffer_store_dwordx4 {R('v',d,4)}, v{128 if o < 2 else 129}, {srd(SW)}, 0 offen offset:{2048*o if o < 2 else 0} sc1")
    a.e("s_branch L_loop")
    a.label("L_exit1b")
    spin_until(a, "L_tag", "v30", SDBG, "v[24:25]", "v_cmp_eq_u32 vcc, 0, v25\ns_nop 1")
    a.e(f"buffer_store_dwordx2 v[24:25], v29, {srd(SW)}, 0 offen sc1")
    def lw(n):
        h, m = n // 30, n % 30
        def f():
            if m and m % 4 == 0: a.e(f"s_add_u32 s{94+h}, s{94+h}, 4096")
            a.vm(f"buffer_load_dwordx4 {R('a',4*n,4)}, v{LO}, {srd(SW)}, s{94+h} offen offset:{1024*(m%4)} sc1", regs('a', 4*n, 4))
        return f
    wl = [lw(n) for n in range(60)]
    def take(n):
        r = wl[:n]; del wl[:n]; return r
    a.e(f"s_add_u32 s66, s66, L_exit2-L_exit1b\ns_addc_u32 s67, s67, 0\ns_mov_b32 s48, 4\ns_branch L_loop")
    a.label("L_exit2")
    a.e(f"buffer_load_dwordx2 v[26:27], v28, {srd(SW)}, 0 offen sc1")
    a.e("s_add_u32 s66, s66, L_exit3-L_exit2\ns_addc_u32 s67, s67, 0\ns_mov_b32 s48, 1\ns_branch L_loop")
    a.label("L_exit3")
    spin_until(a, "L_wf", "v28", SW, "v[26:27]", "v_cmp_ne_u64 vcc, v[24:25], v[26:27]\ns_nop 1")
    stamp(a, 3)
    a.vq = [{'P'}] * 10
    body(a, 'mid', take(cfg.n8), False, {'P'}, fill=f8)
    body(a, 'last', take(cfg.n9), False, None, fill=f9)
    lastw = take(cfg.nl)
    for n, (k, j) in enumerate([(k, 2 * p + h) for p in range(2) for k in range(6) for h in range(2)]):
        p1_mfma(a, 1, k, j)
        if n % 6 == 3 and lastw: lastw.pop(0)()
    stamp(a, 4)
    def hstore(b, P):
        i, jm = b % 3, b // 3
        a.vm(f"buffer_store_dwordx4 {R('v',P,4)}, v19, {srd(SW)}, s{52+jm} offen offset:{512*i}{cfg.hsc}", {'HS%d' % jm})
    stp = [int(x) for x in cfg.stp.split(",")]
    assert all(stp[b] >= 2 * b + 3 or (b == 5 and stp[b] >= 12) for b in range(6)) and stp == sorted(stp) and stp[2] <= 12
    P = gelu_all(a, take(cfg.ng), hstore, stp)
    stamp(a, 5)
    CMP = "v_cmp_ne_u64 vcc, v[24:25], v[26:27]\ns_nop 1"
    a.need({'HS0'})
    a.vm(f"buffer_store_dwordx2 v[24:25], v{VHF_ST}, {srd(SW)}, 0 offen sc1")
    stamp(a, 6)
    late = {stp[b] - 12: b for b in range(6) if stp[b] > 12}
    post = take(cfg.na) + [lambda: a.vm(f"buffer_load_dwordx2 v[26:27], v{VHF_PL}, {srd(SW)}, 0 offen sc1", {'HF'})] + take(cfg.nb)
    for k, f in enumerate(post):
        f()
        if k + 1 in late: b = late.pop(k + 1); hstore(b, P(b))
    assert not late
    a.need({'HS1'})
    a.vm(f"buffer_store_dwordx2 v[24:25], v{VHF_ST}, {srd(SW)}, s79 offen sc1")
    a.need({'HF'})
    stamp(a, 7)
    spin_until(a, "L_hf", f"v{VHF_PL}", SW, "v[26:27]", CMP)
    stamp(a, 8)
    if cfg.stamps: a.e("s_mov_b32 s80, s83")
    def lh(n):
        q, s = n // 12, n % 12
        d = HR + 4 * s; m = s % 6
        def f():
            if m == 0: a.e(f"s_add_u32 s61, s{68+q}, s{92+s//6}")
            if m == 4: a.e("s_add_u32 s61, s61, 4096")
            a.vm(f"buffer_load_dwordx4 {R('v',d,4)}, v{LO}, {srd(SW)}, s61 offen offset:{1024*(m%4)} sc1", regs('v', d, 4))
        return f
    first_w = 60 - len(wl)
    loads = []; hidx = {}
    for n in range(48):
        if n < 12:
            for b in range(5):
                if 5 * n + b >= first_w: loads.append(wl.pop(0))
        hidx[n] = len(loads); loads.append(lh(n))
    pos = 0
    def issue_upto(k):
        nonlocal pos
        while pos <= min(k, len(loads) - 1): loads[pos](); pos += 1
    issue_upto(min(hidx[0] + 11, hidx[cfg.ahead - 1]))
    def reduce_ops(q, packed):
        B0 = (q % 2) * PB
        rd = [(lambda w=w, h=h: a.lds(f"ds_read_b128 {R('v',PART+8*w+4*h,4)}, v97 offset:{B0+w*16*RS+16*h}", regs('v', PART+8*w+4*h, 4))) for w in range(4) for h in range(2)]
        ad = []
        for (x, y) in ((0, 1), (2, 3), (0, 2)):
            if packed:
                for e in range(0, 8, 2):
                    ad.append(lambda x=x, y=y, e=e: (a.need(regs('v', PART+8*x+e, 2) | regs('v', PART+8*y+e, 2)), a.e(f"v_pk_add_f32 {R('v',PART+8*x+e,2)}, {R('v',PART+8*x+e,2)}, {R('v',PART+8*y+e,2)}")))
            else:
                for e in range(8):
                    ad.append(lambda x=x, y=y, e=e: (a.need({('v', PART+8*x+e), ('v', PART+8*y+e)}), a.e(f"v_add_f32 v{PART+8*x+e}, v{PART+8*x+e}, v{PART+8*y+e}")))
        cv = [(lambda e=e: a.e(f"v_cvt_pk_bf16_f32 v{OPK+e}, v{PART+2*e}, v{PART+2*e+1}")) for e in range(4)]
        def st():
            a.vm(f"buffer_store_dwordx4 {R('v',OPK,4)}, v98, {srd(SO)}, s{4+q} offen{cfg.outsc}")
        return rd, ad, cv, st
    def pwrite(q, b):
        a.lds(f"ds_write_b128 v96, {R('v',ACC2[q%2]+4*b,4)} offset:{(q%2)*PB+64*b}", {'PW'})
    def pwrite64(q, h):
        b, e = h // 2, 2 * (h % 2)
        a.lds(f"ds_write_b64 v96, {R('v',ACC2[q%2]+4*b+e,2)} offset:{(q%2)*PB+64*b+4*e}", {'PW'})
    def mm(n, b):
        q, s = n // 12, n % 12
        C = ACC2[q % 2]; A = (s * 5 + b) * 4; B = HR + 4 * s
        a.need(regs('v', B, 4) | regs('a', A, 4))
        a.e(f"v_mfma_f32_16x16x32_bf16 {R('v',C+4*b,4)}, {R('a',A,4)}, {R('v',B,4)}, {'0' if s == 0 else R('v',C+4*b,4)}")
    PWK = [int(x) for x in cfg.pwk.split(",")]; KB = cfg.kbar
    def red_gap(q, k, b):
        if k in PWK:
            if cfg.w64: pwrite64(q - 1, PWK.index(k))
            else: pwrite(q - 1, PWK.index(k))
        if k == KB: a.need({'PW'}); a.e("s_barrier")
        if k > KB and b != 1 and rd: rd.pop(0)()
        elif k > KB + 3 and (len(rd) <= 4):
            for _ in range(2 if (cfg.add2 and b != 1 and not rd) else 1):
                if ad:
                    if len(rd) == 0 or len(ad) > 16: ad.pop(0)()
                elif cv: cv.pop(0)()
                elif stq: stq.pop(0)()
        if k == 59:
            while ad or cv or stq: (ad or cv or stq).pop(0)()
    for n in range(48):
        q, s = n // 12, n % 12
        if n == 1 and not cfg.fine2: stamp(a, 9)
        if cfg.fine2 and n % 4 == 0: a.e(f"s_memtime s[{FP[n//4]}:{FP[n//4]+1}]")
        if q > 0 and s == 0:
            rd, ad, cv, st = reduce_ops(q - 1, False); stq = [st]
        if n == 24 - cfg.ahead:
            a.need({'HF2'})
            spin_until(a, "L_hg", f"v{VHF_PL}", SW, "v[26:27]", CMP, soff="s79")
        for b in range(5):
            mm(n, b)
            if n + cfg.ahead < 48:
                tgt = min(hidx[n + cfg.ahead], hidx[n + 1] + 12)
                rem = tgt + 1 - pos
                k = -(-rem // (5 - b)) if rem > 0 else 0
                if b >= 1 or rem > 1: issue_upto(pos + k - 1)
            if n == 24 - cfg.ahead - cfg.pb and b == 3:
                a.vm(f"buffer_load_dwordx2 v[26:27], v{VHF_PL}, {srd(SW)}, s79 offen sc1", {'HF2'})
            if q > 0: red_gap(q, 5 * s + b, b)
        if q > 0 and s == 11:
            assert not (rd or ad or cv or stq), (len(rd), len(ad), len(cv), len(stq))
    done = 0
    assert pos == len(loads), (pos, len(loads))
    if cfg.fine2: a.e(f"s_memtime s[{FP[12]}:{FP[12]+1}]")
    stamp(a, 10)
    if done == 0: a.e("s_nop 3")
    for b in range(done, 5):
        if b == 4 and done: a.e("s_nop 6")
        pwrite(3, b)
    a.need({'PW'}); a.e("s_barrier")
    rd, ad, cv, st = reduce_ops(3, True)
    for f in rd + ad + cv: f()
    st()
    dump_stamps(a, 12)
    if cfg.fine2:
        a.e("v_add_u32 v31, 0x40000, v31")
        for k in range(13): a.e(f"v_mov_b32 v30, s{FP[k]}\nbuffer_store_dword v30, v31, {srd(SW)}, 0 offen offset:{4*k}\ns_nop 1")
    a.label("L_end")
    a.e("s_endpgm")
    return a.text()

HEADER = """; GEGLU MLP, one launch:  out = (gelu_tanh(x Wg) * (x Wu)) Wd   x[2048,640] Wg,Wu[640,1536] Wd[1536,640] bf16
; @launch grid=(256,1,1) block=(256,1,1) lds=%d
.amdgcn_target "amdgcn-amd-amdhsa--gfx950"
.text
.globl %s_kernel
.p2align 8
.type %s_kernel,@function
%s_kernel:
"""
FOOTER = """.section .rodata,"a"
.p2align 6
.amdhsa_kernel %s_kernel
  .amdhsa_next_free_vgpr 512
  .amdhsa_next_free_sgpr 102
  .amdhsa_accum_offset 256
  .amdhsa_group_segment_fixed_size 0
  .amdhsa_kernarg_size 56
  .amdhsa_user_sgpr_count 2
  .amdhsa_user_sgpr_kernarg_segment_ptr 1
  .amdhsa_system_sgpr_workgroup_id_x 1
  .amdhsa_float_denorm_mode_32 3
.end_amdhsa_kernel
"""
if __name__ == "__main__":
    out = sys.argv[1]
    for kv in sys.argv[2:]:
        k, v = kv.split("=")
        assert hasattr(cfg, k), k
        setattr(cfg, k, (int(v) if v.lstrip('-').isdigit() else v.replace("_", " ")))
    open(out, "w").write(HEADER % (3*STAGE+4*3072, NAME, NAME, NAME) + kernel() + FOOTER % NAME)
```

```python
import math, sys, os
from asmlib import *

NAME = "standalone__glu_gated_geglu__prompt"
H_OFF, WD_OFF, FW_OFF, FH_OFF, ST_OFF, WS_BYTES = 0, 0x600000, 0x7E0000, 0x7F0000, 0x800000, 0x900000
OOB = 0x40000000
STAGE = 40960
K0 = -2.0 * math.log2(math.e) * math.sqrt(2.0 / math.pi)
K1 = K0 * 0.044715
SX, SG_, SU, SD, SW, SO, SDBG = 8, 12, 16, 20, 24, 28, 32
def srd(n): return f"s[{n}:{n+3}]"

class Cfg:
    stamps = 0; fine1 = 0; fine2 = 0; pro = 0
    rot = "xcd"; ftmap = 0; p2map = 1; rho = 0; half = 1; pwk = "3,5,7,9,10,12,14,15,17,19"; kbar = 22; w64 = 1; add2 = 0
    n8 = 7; n9 = 11; nl = 0; n0 = 3; ng = 14; na = 18; nb = 4; gapper = 3
    stp = "3,5,7,9,11,12"
    ahead = 8; pb = 8; spin = 100000; psleep = 0; hsc = " sc1"; outsc = " sc1"
    t1gap = 8; cpf = 0; pre = 100; bar = 4; wst = 0; fbpos = 99; wrpos = 0; stag = 0; nodma = 0; nobar = 0; nord = 0; dpos = "5,10,14,18,22,26,30,34,38,42"; tlb = 0
cfg = Cfg()

STV = 136
def stamp(a, i):
    if cfg.stamps:
        a.e(f"s_memrealtime s[84:85]\ns_memtime s[86:87]\ns_waitcnt lgkmcnt(0)\nv_mov_b32 v{STV+2*i}, s84\nv_mov_b32 v{STV+1+2*i}, s86")
        a.lq = []
def dump_stamps(a, n):
    if not cfg.stamps: return
    a.e("s_waitcnt vmcnt(0)")
    stamp(a, n - 1)
    a.e(f"s_lshl_b32 s82, s2, 2\ns_add_u32 s82, s82, s36\ns_lshl_b32 s82, s82, 7\ns_add_u32 s82, s82, {ST_OFF}\nv_mov_b32 v31, s82\ns_mov_b64 exec, 1\nv_mov_b32 v30, s80\nbuffer_store_dword v30, v31, {srd(SW)}, 0 offen offset:96")
    for i in range(0, 2 * n, 2):
        a.e(f"buffer_store_dwordx2 v[{STV+i}:{STV+i+1}], v31, {srd(SW)}, 0 offen offset:{4*i}")

ACC = 160
FP = [8,10,12,14,16,18,20,22,40,42,44,46,48]
LO = 130; VF1 = 133; VF2 = 134; VHF_PL = 135
def acc(i, jm): return ACC + 16 * (2 * i + jm)

class Fill:
    def __init__(self, a, text=""):
        self.a = a; self.q = []
        self.add(text)
    def add(self, text):
        for l in text.split("\n"):
            l = l.strip()
            if l: self.q.append(l.replace("|", "\n"))
    def emit(self, n):
        while n > 0 and self.q:
            c = self.q.pop(0); self.a.e(c); n -= c.count("\n") + 1
    def flush(self): self.emit(1 << 30)

IN = [32, 48]; OUT = 64
HSO = [52, 53, 73, 74, 75, 76]
class Wide:
    n = "W"
    @staticmethod
    def out_rd(a, s, o):
        return [(lambda h=h: a.lds(f"ds_read_b64_tr_b16 {R('v',OUT+4*o+2*h,2)}, v{16+o//2} offset:{16384+12288*(o%2)+(32*s+4*h)*192}", regs('v', OUT+4*o+2*h, 2)), 16 + o // 2) for h in range(2)]
    @staticmethod
    def in_rd(a, s, n):
        return [(lambda: a.lds(f"ds_read_b128 {R('v',IN[s]+4*n,4)}, v{12+s} offset:{2048*n}", regs('v', IN[s]+4*n, 4)), 12 + s)]
    @staticmethod
    def mfma(s, o, n): return OUT + 4*o, IN[s] + 4*n, ACC + 16 * (3 * (n//2) + o//2) + 8 * (o%2) + 4 * (n%2)
    dma = [(43, [(2+i, SX, 40, 1024*i) for i in range(4)]), (44, [(6+i, SG_, 41, 1024*i) for i in range(3)]), (45, [(6+i, SU, 41, 1024*i) for i in range(3)])]
    adv = ""
    last = [(o, 2 * p + h) for p in range(2) for o in range(6) for h in range(2)]
class Tall:
    n = "T"
    @staticmethod
    def out_rd(a, s, o):
        return [(lambda: a.lds(f"ds_read_b128 {R('v',OUT+4*o,4)}, v{12+s} offset:{2048*o}", regs('v', OUT+4*o, 4)), 12 + s)]
    @staticmethod
    def in_rd(a, s, n):
        return [(lambda h=h: a.lds(f"ds_read_b64_tr_b16 {R('v',IN[s]+4*n+2*h,2)}, v{16+n//2} offset:{24576+8192*(n%2)+(32*s+4*h)*128}", regs('v', IN[s]+4*n+2*h, 2)), 16 + n // 2) for h in range(2)]
    @staticmethod
    def mfma(s, o, n): return IN[s] + 4*n, OUT + 4*o, ACC + 16 * (2 * (o//2) + n//2) + 8 * (n%2) + 4 * (o%2)
    dma = [(43, [(2+i, SX, 40, 1024*i) for i in range(4)]), (3, [(2+i, SX, 57, 1024*i) for i in range(2)]), (44, [(6+i, SG_, 41, 1024*i) for i in range(2)]), (45, [(6+i, SU, 41, 1024*i) for i in range(2)])]
    adv = "s_add_u32 s57, s40, 40960"
    last = [(o, n if o % 2 == 0 else 3 - n) for o in range(6) for n in range(4)]

def p1_mfma(a, ty, s, o, n, first=False):
    A, B, D = ty.mfma(s, o, n)
    a.need(regs('v', A, 4) | regs('v', B, 4))
    a.e(f"v_mfma_f32_16x16x32_bf16 {R('v',D,4)}, {R('v',A,4)}, {R('v',B,4)}, {'0' if first else R('v',D,4)}")

def dma_ops(a, ty, tag, split=False):
    ops = []
    for m0src, lst in ty.dma:
        g = lambda m0src=m0src: a.e(f"s_add_u32 m0, s42, s{m0src}" + ("" if split else "\ns_nop 0"))
        g.salu = True; ops.append(g)
        for (v, sr, so, off) in lst:
            ops.append(lambda v=v, sr=sr, so=so, off=off: a.vq.append({tag}) if (cfg.nodma and tag == 'N') else a.vm(f"buffer_load_dwordx4 v{v}, {srd(sr)}, s{so} offen offset:{off} lds", {tag}))
            ops[-1].so = so
    return ops
def dma_advance(a, ty):
    a.e("s_add_u32 s40, s40, 128\ns_add_u32 s41, s41, 196608\ns_cmp_eq_u32 s40, s55\ns_cselect_b32 s40, s50, s40\ns_cselect_b32 s41, s51, s41")
    a.e(f"s_add_u32 s42, s42, {STAGE}\ns_cmp_eq_u32 s42, {3*STAGE}\ns_cselect_b32 s42, 0, s42")
    a.e(ty.adv)
def rd_advance_s(a):
    a.e(f"s_add_u32 s46, s46, {STAGE}\ns_cmp_eq_u32 s46, {3*STAGE}\ns_cselect_b32 s47, {(-2*STAGE) & 0xffffffff:#x}, s49\ns_cselect_b32 s46, 0, s46")

SNAKE = [(k, j if k % 2 == 0 else 3 - j) for k in range(6) for j in range(4)]
def body(a, ty, t_kind, vmops, is_dma, wait_tag, extra=(), fill=None, pre_bar=None):
    BAR = cfg.bar
    slots = [(1, g) for g in range(BAR, 24)] + [(0, g) for g in range(24)] + [(2, g) for g in range(BAR)]
    if t_kind == 'last': slots = slots[:48 - BAR]
    plan = {p: [] for p in slots}
    def cnt(p, t): return sum(c for _, tt, c in plan[p] if tt == t)
    def fits(p, t, c):
        m, v, sc = cnt(p, 'm'), cnt(p, 'v'), cnt(p, 's')
        if p[1] in (23, 11, 19) : sc += 1
        if t == 'm': return m == 0 and v <= 1 and m + v + sc + 1 <= 3
        if t == 'v': return v + c <= (1 if m else 2) and m + v + sc + c <= 3
        return m + v + sc + c <= 3 or (c >= 3 and m + v + sc == 0)
    def place(f, lo, t='m', c=1):
        for n in range(lo, len(slots)):
            if fits(slots[n], t, c): plan[slots[n]].append((f, t, c)); return n
        assert t_kind == 'last' or t != 'm', "no room"
        plan[slots[-1]].append((f, t, c)); return len(slots) - 1
    idx = {p: n for n, p in enumerate(slots)}
    lastuse = {}
    resv = []
    if is_dma and t_kind == 'mid' and cfg.dpos:
        resv = [int(x) for x in cfg.dpos.split(",")]
        for n in resv: plan[slots[n]].append((None, 'm', 1))
    for (seg, s) in ((1, 0), (0, 1)):
        base = idx[(seg, BAR if seg == 1 else 0)]; g0 = BAR if seg == 1 else 0
        for o in range(6):
            lo = base + max(0, 4 * o + 3 - g0)
            for f, av in ty.out_rd(a, s, o):
                lo = place(f, lo); lastuse[av] = max(lastuse.get(av, 0), lo)
        lo = base
        for n in range(4):
            for f, av in ty.in_rd(a, s, n):
                lo = place(f, lo); lastuse[av] = max(lastuse.get(av, 0), lo); lo += 1
    lo = 0
    if t_kind == 'first':
        if not cfg.wrpos:
            for f in extra: plan[slots[23 - BAR - 6]].append((f, 'x', 0))
        lo = 23 - BAR - 5
    else:
        for f in extra: lo = place(f, lo) + 1
    if vmops:
        nv = len(vmops)
        span = 0 if is_dma else min(len(slots) - 1, int(nv * cfg.gapper * 2))
        start = lo if is_dma else len(slots) - 1 - span
        p = start; pend = None
        for k, f in enumerate(vmops):
            if getattr(f, 'salu', False): pend = f; continue
            if resv:
                q = resv.pop(0); pl = plan[slots[q]]; pl[pl.index((None, 'm', 1))] = (f, 'm', 1)
            else: q = place(f, max(p + (1 if pend else 0), start + (k * span) // nv))
            if pend:
                for n in range(q - 1, p - 2, -1):
                    if n < p or fits(slots[n], 's', 1): plan[slots[max(n, p - 1, 0)]].append((pend, 's', 1)); break
                pend = None
            p = q + 1
        lo = p
    if t_kind == 'first' and cfg.wrpos == 1:
        for k, f in enumerate(extra): plan[slots[len(slots) - 4 + k]].append((f, 'm', 1))
    if t_kind != 'last':
        f46 = lambda: a.e(f"s_add_u32 s46, s46, {STAGE}\ns_cmp_eq_u32 s46, {3*STAGE}")
        f46.scc = True
        n = place(f46, 2, 's', 2)
        plan[slots[n + 1]].insert(0, (lambda: a.e(f"s_cselect_b32 s47, {(-2*STAGE) & 0xffffffff:#x}, s49\ns_cselect_b32 s46, 0, s46"), 's', 2))
        for v in sorted(lastuse): place(lambda v=v: a.e(f"v_add_u32 v{v}, s47, v{v}"), max(lastuse[v] + 1, n + 2), 'v')
        if is_dma:
            lm0 = max(i for i, p in enumerate(slots) if any(getattr(f, 'salu', False) for f, _, _ in plan[p]))
            lx = max(i for i, p in enumerate(slots) if any(getattr(f, 'so', 0) in (40, 57) for f, _, _ in plan[p]))
            def sp(txt, lo, hi=None):
                c = txt.count("\n") + 1
                return place(lambda: a.e(txt), lo, 's', c)
            n = sp("s_add_u32 s40, s40, 128", lx + 1)
            n = sp("s_cmp_eq_u32 s40, s55\ns_cselect_b32 s40, s50, s40\ns_cselect_b32 s81, s82, s100", n + 1)
            if ty.adv: sp(ty.adv, n + 1)
            sp("s_add_u32 s41, s41, s81", max(lo, n + 1))
            sp(f"s_add_u32 s42, s42, {STAGE}\ns_cmp_eq_u32 s42, {3*STAGE}\ns_cselect_b32 s42, 0, s42", lm0 + 1)
            if pre_bar: sp("s_sub_u32 s48, s48, 1", 5)
    for (seg, g) in slots:
        k, j = SNAKE[g]
        has_m = not (seg == 1 and t_kind == 'first')
        s = 0 if seg == 0 else 1
        if has_m:
            if g == 0: a.need(regs('v', IN[s], 16) | regs('v', OUT, 12))
            if g == 12: a.need(regs('v', OUT + 12, 8))
            p1_mfma(a, ty, s, k, j, first=(t_kind == 'first' and seg == 0))
        for f, t, c in plan[(seg, g)]:
            f()
            if not has_m and getattr(f, 'salu', False): a.e('s_nop 0')
        while fill and has_m and fill.q:
            x = fill.q[0]; t = 'v' if x.startswith('v_') else 's'; c = x.count("\n") + 1
            if any(getattr(ff, 'scc', False) for ff, _, _ in plan[(seg, g)]) or not fits((seg, g), t, c): break
            plan[(seg, g)].append((None, t, c)); fill.emit(1)
    if fill: fill.flush()
    if t_kind != 'last':
        if pre_bar: a.e(pre_bar)
        l = a._cnt(a.vq, wait_tag)
        a.wait(vm=len(a.vq) - l - 1, lgkm=0)
        if not (cfg.nobar and pre_bar): a.e("s_barrier")

def gelu_all(a, vm_ops, store, stp):
    blocks = [(i, jm) for jm in range(2) for i in range(3)]
    def T(b): return 88 - 56 + 0 + 8 * (b % 2)
    def P(b): return [112, 116, 120, 124, 88, 92][b]
    def pk(op, d, x, y, z=None, mod=""):
        return f"v_pk_{op}_f32 {R('v',d,2)}, {x}, {y}" + (f", {z}" if z else "") + mod
    def S1(b):
        A = ACC + 16 * b; t = T(b)
        return ([pk("mul", t+2*p, R('v',A+2*p,2), R('v',A+2*p,2)) for p in range(4)] +
                [pk("fma", t+2*p, R('v',t+2*p,2), "v[20:21]", "v[22:23]") for p in range(4)] +
                [pk("mul", t+2*p, R('v',t+2*p,2), R('v',A+2*p,2)) for p in range(4)])
    def S3(b):
        A = ACC + 16 * b; t = T(b)
        return ([pk("mul", t+2*p, R('v',t+2*p,2), R('v',A+2*p,2)) for p in range(4)] +
                [pk("mul", t+2*p, R('v',t+2*p,2), R('v',A+8+2*p,2)) for p in range(4)] +
                [f"v_cvt_pk_bf16_f32 v{P(b)+p}, v{t+2*p}, v{t+2*p+1}" for p in (0, 2, 1, 3)])
    vm_ops = list(vm_ops); nv = len(vm_ops); ph = [0]
    def vm_slot():
        ph[0] += 1
        for b in range(6):
            if stp[b] == ph[0] and b < 5: store(b, P(b))
        want = (ph[0] * nv + 11) // 12
        while nv - len(vm_ops) < want and vm_ops: vm_ops.pop(0)()
    for l in S1(0): a.e(l)
    for b in range(6):
        t = T(b)
        other = S3(b - 1) if b > 0 else []
        k = 0
        for r in range(8):
            a.e(f"v_exp_f32 v{t+r}, v{t+r}")
            for _ in range(2 if r < 4 else 1):
                if k < len(other): a.e(other[k]); k += 1
            if r >= 4:
                p = r - 4 if r < 7 else None
                if r == 4 and b > 0: pass
                a.e(pk("add", t+2*(r-4), R('v',t+2*(r-4),2), "1.0", mod=" op_sel_hi:[1,0]")) if r < 7 else None
        if b > 0: a.e(f"v_permlane32_swap_b32 v{P(b-1)}, v{P(b-1)+2}")
        else: a.e("s_nop 0")
        a.e(pk("add", t+6, R('v',t+6,2), "1.0", mod=" op_sel_hi:[1,0]"))
        if b > 0:
            a.e(f"v_permlane32_swap_b32 v{P(b-1)+1}, v{P(b-1)+3}")
        vm_slot()
        other = S1(b + 1) if b < 5 else []
        k = 0
        for r in range(8):
            a.e(f"v_rcp_f32 v{t+r}, v{t+r}")
            for _ in range(2 if r < 4 else 1):
                if k < len(other): a.e(other[k]); k += 1
        vm_slot()
    for l in S3(5): a.e(l)
    a.e(f"v_permlane32_swap_b32 v{P(5)}, v{P(5)+2}\ns_nop 0\nv_permlane32_swap_b32 v{P(5)+1}, v{P(5)+3}")
    if stp[5] == 12: store(5, P(5))
    return P

def spin_until(a, lab, voff, sr, data, cmp, soff=0):
    a.e(cmp)
    a.e(f"s_mov_b32 s83, {cfg.spin}\ns_cbranch_vccz {lab}_ok")
    a.label(f"{lab}_spin")
    if cfg.psleep: a.e(f"s_sleep {cfg.psleep}")
    a.e(f"buffer_load_dwordx2 {data}, {voff}, {srd(sr)}, {soff} offen sc1\ns_waitcnt vmcnt(0)")
    a.e(cmp)
    a.e(f"s_sub_u32 s83, s83, 1\ns_cbranch_vccz {lab}_ok\ns_cmp_lg_u32 s83, 0\ns_cbranch_scc1 {lab}_spin")
    a.label(f"{lab}_ok")

P2L = STAGE
HR = 160; ACC2 = [32, 52]; PART = 208; OPK = 240; RS = 336; PB = 4 * 16 * RS

def div_rows(src, q, r, tmp, magic, sh, d):
    return f"v_mul_u32_u24 {q}, {magic}, {src}\nv_lshrrev_b32 {q}, {sh}, {q}\nv_mul_u32_u24 {tmp}, {d}, {q}\nv_sub_u32 {r}, {src}, {tmp}"

def phase1(a, ty, wl):
    L = lambda x: f"L{ty.n}_{x}"
    tall = ty is Tall
    def take(n):
        r = wl[:n]; del wl[:n]; return r
    rows = 48 if tall else 32
    a.c(f"x DMA voffsets v2..v5: row = {rows}*wave + 8*i + lane/8, chunk = (lane&7) ^ ((row>>1)&7)")
    a.e(f"""v_lshrrev_b32 v108, 3, v1
      v_mad_u32_u24 v108, v107, {rows}, v108
      v_mul_u32_u24 v108, 1280, v108
      v_lshrrev_b32 v109, 4, v1
      v_and_b32 v110, 7, v1
      v_xor_b32 v31, v110, v109
      v_lshl_add_u32 v2, v31, 4, v108
      v_xor_b32 v31, 4, v31
      v_lshl_add_u32 v3, v31, 4, v108
      v_add_u32 v4, {2*9216}, v2
      v_add_u32 v3, 9216, v3
      v_add_u32 v5, {2*9216}, v3""")
    if tall:
        a.c("s37 m-tile (192 rows) = 5*(xcd>>2) + idx/6 ; s38 f-tile (64 columns) = 6*(xcd&3) + idx%6 ; s91 = idx%6")
        a.e(f"""s_mul_i32 s60, s54, 43
          s_lshr_b32 s60, s60, 8
          s_mul_i32 s91, s60, 6
          s_sub_u32 s91, s54, s91
          s_lshr_b32 s37, s39, 2
          s_mul_i32 s37, s37, 5
          s_add_u32 s37, s37, s60
          s_and_b32 s90, s39, 3
          s_mul_i32 s38, s90, 6
          s_add_u32 s38, s38, s91
          s_mul_i32 s50, s37, {192*1280}
          s_mul_i32 s43, s36, 6144
          s_lshl_b32 s51, s38, 7
          s_add_u32 s3, s43, 4096
          s_lshl_b32 s44, s36, 11
          s_add_u32 s45, s44, 32768
          s_add_u32 s44, s44, 24576""")
        a.e("""v_lshrrev_b32 v108, 3, v1
          v_lshl_add_u32 v108, v107, 4, v108
          v_mul_u32_u24 v108, 3072, v108
          v_and_b32 v109, 1, v109
          v_lshlrev_b32 v109, 1, v109
          v_xor_b32 v109, v110, v109
          v_lshl_add_u32 v6, v109, 4, v108
          v_xor_b32 v109, 4, v109
          v_lshl_add_u32 v7, v109, 4, v108""")
        a.e(f"v_add_u32 v7, {8*3072-1024}, v7")
    else:
        a.c("rows 1920..2047 ; s38 f-tile (96 columns) = 4*(xcd&3) + 2*(xcd>>2) + (idx-30) ; s91 = s38 & 3")
        a.e(f"""s_lshr_b32 s91, s39, 2
          s_lshl_b32 s91, s91, 1
          s_add_u32 s91, s91, s54
          s_sub_u32 s91, s91, 30
          s_and_b32 s90, s39, 3
          s_lshl_b32 s38, s90, 2
          s_add_u32 s38, s38, s91
          s_mov_b32 s50, {1920*1280}
          s_lshl_b32 s43, s36, 12
          s_mul_i32 s51, s38, 192
          s_mul_i32 s44, s36, 3072
          s_add_u32 s45, s44, 28672
          s_add_u32 s44, s44, 16384
          v_mul_u32_u24 v107, 49152, v107""")
        for i in range(3):
            src = "v1"
            if i: a.e(f"v_add_u32 v31, {64*i}, v1"); src = "v31"
            a.e(div_rows(src, "v108", "v109", "v109", 43691, 19, 12))
            a.e(f"v_lshrrev_b32 v110, 2, v108\nv_and_b32 v110, 2, v110\nv_xor_b32 v109, v109, v110")
            a.e(f"v_mul_u32_u24 v108, 3072, v108\nv_add_u32 v108, v107, v108")
            if i: a.e(f"v_subrev_u32 v108, {1024*i}, v108")
            a.e(f"v_lshl_add_u32 v{6+i}, v109, 4, v108")
    K0R = {"xcd": "s39", "none": "0"}[cfg.rot]
    a.e(f"""s_lshl_b32 s40, {K0R}, 7
      s_add_u32 s40, s40, s50
      s_mul_i32 s41, {K0R}, 196608
      s_add_u32 s41, s41, s51
      s_add_u32 s55, s50, 1280
      s_mov_b32 s42, 0""")
    a.e(ty.adv)
    a.e("s_waitcnt lgkmcnt(0)")
    stamp(a, 0)
    for f in dma_ops(a, ty, 'T0'): f()
    dma_advance(a, ty)
    a.e(f"s_mov_b32 s{SDBG+2}, 256\ns_mov_b32 s{SDBG+3}, 0x20000\nv_mov_b32 v30, 0")
    if tall:
        a.c("launch tag: workgroup 0 / wave 3 publishes the real-time counter in d_debug")
        a.e("s_lshl_b32 s60, s2, 2\ns_add_u32 s60, s60, s36\ns_cmp_lg_u32 s60, 3\ns_cbranch_scc1 L_notag")
        a.e(f"s_memrealtime s[60:61]\ns_waitcnt lgkmcnt(0)\ns_or_b32 s61, s61, 0x80000000\nv_mov_b32 v24, s60\nv_mov_b32 v25, s61\nbuffer_store_dwordx2 v[24:25], v30, {srd(SDBG)}, 0 offen sc1")
        a.label("L_notag")
    f1 = Fill(a, f"""s_mov_b32 s46, 0
      s_mov_b32 s49, {STAGE}
      s_mov_b32 s100, 196608
      s_mov_b32 s82, {(-9*196608) & 0xffffffff:#x}
      s_mov_b32 s{SD+2}, {1536*640*2}
      s_mov_b32 s{SD+3}, 0x20000
      s_mov_b32 s{SW+2}, {WS_BYTES}
      s_mov_b32 s{SW+3}, 0x20000
      s_mov_b32 s{SO+2}, {2048*640*2}
      s_mov_b32 s{SO+3}, 0x20000
      s_mul_i32 s58, s54, 3
      s_add_u32 s58, s58, s36
      s_mul_i32 s56, s58, {16*1280}
      s_mul_i32 s60, s39, 160
      s_add_u32 s56, s56, s60
      s_cmp_eq_u32 s36, 3|s_cselect_b32 s61, {OOB:#x}, 0
      s_add_u32 s56, s56, s61
      v_cmp_gt_u32 vcc, 32, v1
      s_mul_i32 s62, s36, 3072
      s_add_u32 s62, s62, {3*STAGE}""")
    for i in range(3):
        src = "v1"
        if i: f1.add(f"v_add_u32 v31, {64*i}, v1"); src = "v31"
        f1.add(div_rows(src, "v108", "v109", "v109", 6554, 16, 10))
        f1.add(f"v_mul_u32_u24 v108, 1280, v108\nv_lshl_add_u32 v{112+i}, v109, 4, v108")
        if i: f1.add(f"v_subrev_u32 v{112+i}, {1024*i}, v{112+i}")
    f1.add(f"v_mov_b32 v31, {OOB:#x}\nv_cndmask_b32 v114, v31, v114, vcc")
    f1.add(f"""s_lshr_b32 s63, s36, 1
      s_and_b32 s64, s36, 1
      v_and_b32 v107, 15, v1
      v_lshrrev_b32 v108, 4, v1
      v_bfe_u32 v109, v1, 1, 3
      v_xor_b32 v109, v109, v108
      s_mul_i32 s65, s63, {(96 if tall else 64)*128}
      v_lshlrev_b32 v110, 7, v107
      v_add_u32 v110, s65, v110
      v_lshl_add_u32 v12, v109, 4, v110
      v_xor_b32 v31, 4, v109
      v_lshl_add_u32 v13, v31, 4, v110
      v_bfe_u32 v110, v1, 4, 1
      v_bfe_u32 v109, v1, 2, 2
      v_lshl_add_u32 v31, v108, 3, v109
      v_mul_u32_u24 v31, {128 if tall else 192}, v31
      v_and_b32 v128, 3, v1
      v_lshl_add_u32 v31, v128, 3, v31""")
    if tall:
        f1.add("""s_lshl_b32 s65, s64, 1
          v_bfe_u32 v107, v1, 3, 2
          v_xor_b32 v129, s65, v107
          v_lshl_add_u32 v16, v129, 5, v31
          v_xor_b32 v129, 1, v129
          v_lshl_add_u32 v17, v129, 5, v31""")
    else:
        f1.add("""s_mul_i32 s65, s64, 3
          v_xor_b32 v129, s65, v110
          v_lshl_add_u32 v16, v129, 5, v31
          s_add_u32 s60, s65, 1
          v_xor_b32 v129, s60, v110
          v_lshl_add_u32 v17, v129, 5, v31
          s_add_u32 s60, s65, 2
          v_xor_b32 v129, s60, v110
          v_lshl_add_u32 v18, v129, 5, v31""")
    f1.add("""v_and_b32 v107, 31, v1
      v_lshrrev_b32 v108, 5, v1
      v_lshl_add_u32 v31, v110, 2, v109
      v_mul_u32_u24 v31, 160, v31
      v_lshl_add_u32 v31, v108, 5, v31
      v_lshl_add_u32 v31, v128, 3, v31
      v_add_u32 v115, s62, v31""")
    for f in dma_ops(a, ty, 'T1'):
        if not getattr(f, 'salu', False): f(); f1.emit(cfg.t1gap)
        else: f()
    dma_advance(a, ty)
    f1.flush()
    stamp(a, 1)
    a.need({'T0'})
    a.e("s_barrier")
    stamp(a, 2)
    if cfg.fine1: a.e("s_memtime s[96:97]\ns_waitcnt lgkmcnt(0)\nv_mov_b32 v100, s96")
    f0 = Fill(a, f"""s_lshr_b32 s59, s58, 1
      s_mul_i32 s59, s59, 5120
      s_and_b32 s60, s58, 1
      s_lshl_b32 s60, s60, 9
      s_add_u32 s59, s59, s60
      s_mul_i32 s60, s39, 245760
      s_add_u32 s59, s59, s60
      s_add_u32 s59, s59, s61
      s_add_u32 s59, s59, {WD_OFF}
      v_lshlrev_b32 v31, 4, v107
      v_lshl_add_u32 v31, v108, 10, v31
      v_add_u32 v128, s59, v31
      v_add_u32 v129, 4096, v128
      v_mov_b32 v31, {OOB:#x}
      v_cndmask_b32 v129, v31, v129, vcc
      s_mul_i32 s60, s39, 96
      s_add_u32 s60, s60, s58
      s_lshl_b32 s60, s60, 3
      s_add_u32 s60, s60, s61
      s_add_u32 s60, s60, {FW_OFF}
      v_mov_b32 v29, s60
      s_lshr_b32 s88, s54, 2
      s_and_b32 s58, s39, 6
      s_lshl_b32 s58, s58, 2
      s_add_u32 s88, s88, s58
      s_and_b32 s89, s54, 3
      s_and_b32 s58, s39, 1
      s_lshl_b32 s58, s58, 2
      s_add_u32 s89, s89, s58
      s_and_b32 s59, s88, 1
      s_mul_i32 s59, s59, {6 if cfg.half else 0}
      s_mul_i32 s58, s36, 12
      s_add_u32 s92, s58, s59
      s_xor_b32 s59, s59, 6
      s_add_u32 s93, s58, s59
      s_lshl_b32 s92, s92, 10
      s_lshl_b32 s93, s93, 10
      s_mul_i32 s77, s89, 245760
      s_add_u32 s77, s77, {WD_OFF}
      s_mul_i32 s94, s92, 5
      s_mul_i32 s95, s93, 5
      s_add_u32 s94, s94, s77
      s_add_u32 s95, s95, s77
      v_lshlrev_b32 v{LO}, 4, v1
      s_mul_i32 s60, s89, 96
      s_mul_i32 s61, s36, 24
      s_add_u32 s60, s60, s61
      s_lshl_b32 s60, s60, 3
      s_add_u32 s60, s60, {FW_OFF}
      v_min_u32 v107, 23, v1
      v_lshlrev_b32 v107, 3, v107
      v_add_u32 v28, s60, v107""")
    f8 = Fill(a, f"""v_lshrrev_b32 v107, 5, v1
      v_mul_u32_u24 v107, 49152, v107
      v_and_b32 v108, 31, v1
      v_lshl_add_u32 v19, v108, 4, v107
      v_mov_b32 v20, {f32hex(K1)}
      v_mov_b32 v21, {f32hex(K1)}
      v_mov_b32 v22, {f32hex(K0)}
      v_mov_b32 v23, {f32hex(K0)}
      v_and_b32 v107, 1, v1""")
    if tall:
        f8.add(f"""s_lshl_b32 s60, s37, 1
          s_add_u32 s60, s60, s63
          s_mul_i32 s60, s60, 3
          s_mul_i32 s52, s60, {2*49152}
          s_lshl_b32 s61, s38, 1
          s_add_u32 s61, s61, s64
          s_lshl_b32 s61, s61, 10
          s_add_u32 s52, s52, s61
          s_add_u32 s53, s52, 512
          s_add_u32 s73, s52, {2*49152}
          s_add_u32 s74, s53, {2*49152}
          s_add_u32 s75, s52, {4*49152}
          s_add_u32 s76, s53, {4*49152}
          s_lshl_b32 s60, s60, 2
          s_add_u32 s60, s60, s90
          s_lshl_b32 s60, s60, 4
          s_lshl_b32 s61, s91, 1
          s_add_u32 s61, s61, s64
          s_add_u32 s60, s60, s61
          s_lshl_b32 s60, s60, 3
          s_add_u32 s60, s60, {FH_OFF}
          v_lshlrev_b32 v107, 9, v107
          v_add_u32 v{VF1}, s60, v107
          s_add_u32 s60, s60, 1024
          v_mov_b32 v{VF2}, s60""")
    else:
        f8.add(f"""s_lshl_b32 s60, s63, 1
          s_add_u32 s60, s60, 60
          s_mul_i32 s52, s60, {2*49152}
          s_lshl_b32 s61, s38, 1
          s_add_u32 s61, s61, s64
          s_mul_i32 s61, s61, 1536
          s_add_u32 s52, s52, s61
          s_add_u32 s53, s52, 512
          s_add_u32 s73, s52, 1024
          s_add_u32 s74, s52, {2*49152}
          s_add_u32 s75, s53, {2*49152}
          s_add_u32 s76, s73, {2*49152}
          s_lshl_b32 s60, s60, 2
          s_add_u32 s60, s60, s90
          s_lshl_b32 s60, s60, 4
          s_lshl_b32 s61, s91, 1
          s_add_u32 s61, s61, s64
          s_add_u32 s60, s60, s61
          s_lshl_b32 s60, s60, 3
          s_add_u32 s60, s60, {FH_OFF}
          s_cmp_lt_u32 s61, 4|s_cselect_b32 s61, 64, 0
          v_mul_u32_u24 v107, s61, v107
          v_add_u32 v{VF1}, s60, v107
          v_add_u32 v{VF2}, 512, v{VF1}""")
    f9 = Fill(a, f"""s_mul_i32 s60, s88, 43
      s_lshr_b32 s60, s60, 7
      s_mul_i32 s60, s60, 3
      s_add_u32 s60, s60, 1
      s_cmp_eq_u32 s60, s88|s_cselect_b32 s61, 2, 0
      s_cmp_lt_u32 s88, 30|s_cselect_b32 s61, s61, 0
      s_lshl_b32 s78, s61, 8
      s_xor_b32 s79, s78, 512
      s_lshl_b32 s60, s88, 2
      s_add_u32 s61, s61, s60
      s_mul_i32 s68, s61, 49152
      s_mul_i32 s4, s61, {16*1280}
      s_xor_b32 s61, s61, 2
      s_mul_i32 s70, s61, 49152
      s_mul_i32 s6, s61, {16*1280}
      s_add_u32 s69, s68, 49152
      s_add_u32 s71, s70, 49152
      s_lshl_b32 s60, s60, 1
      s_add_u32 s60, s60, s36
      s_lshl_b32 s60, s60, 7
      s_add_u32 s60, s60, {FH_OFF}
      v_min_u32 v107, 11, v1
      v_lshlrev_b32 v107, 3, v107
      v_add_u32 v{VHF_PL}, s60, v107
      s_mul_i32 s62, s36, {16*RS}
      s_add_u32 s62, s62, {P2L}
      v_and_b32 v107, 15, v1
      v_mul_u32_u24 v107, {RS}, v107
      v_lshrrev_b32 v108, 4, v1
      v_lshl_add_u32 v107, v108, 4, v107
      v_add_u32 v96, s62, v107
      v_min_u32 v31, 39, v1
      """ + div_rows("v31", "v108", "v109", "v109", 6554, 16, 10) + f"""
      s_mul_i32 s62, s36, {4*RS}
      s_add_u32 s62, s62, {P2L}
      v_mul_u32_u24 v107, {RS}, v108
      v_lshl_add_u32 v107, v109, 5, v107
      v_add_u32 v97, s62, v107
      v_cmp_gt_u32 vcc, 40, v1
      v_mul_u32_u24 v108, 1280, v108
      v_lshl_add_u32 v98, v109, 4, v108
      v_mov_b32 v107, {OOB:#x}
      v_cndmask_b32 v98, v107, v98, vcc
      s_mul_i32 s72, s36, {4*1280}
      s_mul_i32 s60, s89, 160
      s_add_u32 s72, s72, s60
      s_add_u32 s4, s4, s72
      s_add_u32 s6, s6, s72
      s_add_u32 s5, s4, {16*1280}
      s_add_u32 s7, s6, {16*1280}""")

    def wr(i):
        def f():
            if i == 0: a.e("s_mov_b32 m0, s62\ns_nop 0")
            a.vm(f"buffer_load_dwordx4 v{112+i}, {srd(SD)}, s56 offen offset:{1024*i} lds", {'WR'})
        return f
    def ldtag(): a.vm(f"buffer_load_dwordx2 v[24:25], v30, {srd(SDBG)}, 0 offen sc1", {'TAG'})
    body(a, ty, 'first', dma_ops(a, ty, 'T2', True), True, {'T1'}, extra=[wr(0), wr(1), wr(2), ldtag] if cfg.wrpos < 2 else [], fill=f0)
    if cfg.fine1: a.e("s_memtime s[96:97]\ns_waitcnt lgkmcnt(0)\nv_mov_b32 v101, s96")
    a.e("s_getpc_b64 s[66:67]")
    a.label(L("pc"))
    first_exit = 'exit0' if cfg.wrpos == 2 else 'exit1'
    a.e(f"s_add_u32 s66, s66, {L(first_exit)}-{L('pc')}\ns_addc_u32 s67, s67, 0")
    a.e("s_and_b32 s101, s54, 1\ns_add_u32 s48, s101, 1" if cfg.stag else "s_mov_b32 s48, 1")
    a.label(L("loop"))
    a.vq = [{'P'}] * 10
    body(a, ty, 'mid', dma_ops(a, ty, 'N', True), True, {'P'}, pre_bar="s_cmp_lg_u32 s48, 0")
    a.e(f"s_cbranch_scc1 {L('loop')}\ns_setpc_b64 s[66:67]")
    def again(frm, to, n): a.e(f"s_add_u32 s66, s66, {L(to)}-{L(frm)}\ns_addc_u32 s67, s67, 0\ns_mov_b32 s48, {n}")
    if cfg.wrpos == 2:
        a.label(L("exit0"))
        for f in (wr(0), wr(1), wr(2), ldtag): f()
        again("exit0", "exit1", 1); a.e(f"s_branch {L('loop')}")
    a.label(L("exit1"))
    if cfg.fine1: a.e("s_memtime s[96:97]\ns_waitcnt lgkmcnt(0)\nv_mov_b32 v102, s96")
    a.c("re-tile the raw Wd piece (landed: older than the tile waited for) and write it out")
    for o in range(3):
        for j in range(2):
            d = 116 + 4*o + 2*j
            a.lds(f"ds_read_b64_tr_b16 {R('v',d,2)}, v115 offset:{64*o+1280*j}", regs('v', d, 2))
    again("exit1", "exit2", 1)
    for o in range(3):
        d = 116 + 4*o
        a.need(regs('v', d, 4))
        a.e(f"buffer_store_dwordx4 {R('v',d,4)}, v{128 if o < 2 else 129}, {srd(SW)}, 0 offen offset:{2048*o if o < 2 else 0} sc1")
    a.e(f"s_branch {L('loop')}")
    a.label(L("exit2"))
    if cfg.fine1: a.e("s_memtime s[96:97]\ns_waitcnt lgkmcnt(0)\nv_mov_b32 v103, s96")
    spin_until(a, L("tag"), "v30", SDBG, "v[24:25]", "v_cmp_eq_u32 vcc, 0, v25\ns_nop 1")
    a.e(f"buffer_store_dwordx2 v[24:25], v29, {srd(SW)}, 0 offen sc1")
    nrem = 3 if cfg.wrpos == 2 else 4
    again("exit2", "exit3", nrem)
    if cfg.stag: a.e("s_sub_u32 s48, s48, s101")
    a.e(f"s_branch {L('loop')}")
    a.label(L("exit3"))
    if cfg.fine1: a.e("s_memtime s[96:97]\ns_waitcnt lgkmcnt(0)\nv_mov_b32 v104, s96")
    a.e(f"buffer_load_dwordx2 v[26:27], v28, {srd(SW)}, 0 offen sc1")
    again("exit3", "exit4", 1); a.e(f"s_branch {L('loop')}")
    a.label(L("exit4"))
    if cfg.fine1: a.e("s_memtime s[96:97]\ns_waitcnt lgkmcnt(0)\nv_mov_b32 v105, s96")
    spin_until(a, L("wf"), "v28", SW, "v[26:27]", "v_cmp_ne_u64 vcc, v[24:25], v[26:27]\ns_nop 1")
    stamp(a, 3)
    a.vq = [{'P'}] * 10
    body(a, ty, 'mid', take(cfg.n8), False, {'P'}, fill=f8)
    if cfg.fine1: a.e("s_memtime s[96:97]\ns_waitcnt lgkmcnt(0)\nv_mov_b32 v106, s96")
    body(a, ty, 'last', take(cfg.n9), False, None, fill=f9)
    lastw = take(cfg.nl)
    for n, (o, i) in enumerate(ty.last):
        p1_mfma(a, ty, 1, o, i)
        if n % 6 == 3 and lastw: lastw.pop(0)()

def mk_wl(a):
    def lw(n):
        h, m = n // 30, n % 30
        def f():
            if m and m % 4 == 0: a.e(f"s_add_u32 s{94+h}, s{94+h}, 4096")
            a.vm(f"buffer_load_dwordx4 {R('a',4*n,4)}, v{LO}, {srd(SW)}, s{94+h} offen offset:{1024*(m%4)} sc1", regs('a', 4*n, 4))
        return f
    return [lw(n) for n in range(60)]

def kernel():
    a = Asm()
    a.e("s_cmp_ge_u32 s2, 256\ns_cbranch_scc1 L_end")
    for n, off in ((SX, 0), (SG_, 8), (SU, 16), (SD, 24), (SW, 48), (SDBG, 40), (SO, 32)):
        a.e(f"s_load_dwordx2 s[{n}:{n+1}], s[0:1], {off}")
    a.e("v_lshrrev_b32 v107, 6, v0\nv_and_b32 v1, 63, v0\nv_readfirstlane_b32 s36, v107")
    for n, size in ((SX, 2048*640*2), (SG_, 640*1536*2), (SU, 640*1536*2)): a.e(f"s_mov_b32 s{n+2}, {size}\ns_mov_b32 s{n+3}, 0x20000")
    a.e("s_and_b32 s39, s2, 7\ns_lshr_b32 s54, s2, 3\ns_cmp_ge_u32 s54, 30\ns_cbranch_scc1 L_wide")
    wl = mk_wl(a)
    phase1(a, Tall, wl)
    a.label("L_gate")
    def take(n):
        r = wl[:n]; del wl[:n]; return r
    stamp(a, 4)
    def hstore(b, P):
        a.vm(f"buffer_store_dwordx4 {R('v',P,4)}, v19, {srd(SW)}, s{HSO[b]} offen{cfg.hsc}", {'HS%d' % (b // 4)})
    stp = [int(x) for x in cfg.stp.split(",")]
    assert all(stp[b] >= 2 * b + 3 or (b == 5 and stp[b] >= 12) for b in range(6)) and stp == sorted(stp) and stp[3] <= 12
    P = gelu_all(a, take(cfg.ng), hstore, stp)
    stamp(a, 5)
    CMP = "v_cmp_ne_u64 vcc, v[24:25], v[26:27]\ns_nop 1"
    for f in take(cfg.n0): f()
    a.need({'HS0'})
    a.vm(f"buffer_store_dwordx2 v[24:25], v{VF1}, {srd(SW)}, 0 offen sc1")
    stamp(a, 6)
    late = {stp[b] - 12: b for b in range(6) if stp[b] > 12}
    post = take(cfg.na) + [lambda: a.vm(f"buffer_load_dwordx2 v[26:27], v{VHF_PL}, {srd(SW)}, s78 offen sc1", {'HF'})] + take(cfg.nb)
    for k, f in enumerate(post):
        f()
        if k + 1 in late: b = late.pop(k + 1); hstore(b, P(b))
        if k + 1 == min(cfg.fbpos, len(post)):
            assert not late
            a.need({'HS1'})
            a.vm(f"buffer_store_dwordx2 v[24:25], v{VF2}, {srd(SW)}, 0 offen sc1")
    a.need({'HF'})
    stamp(a, 7)
    spin_until(a, "L_hf", f"v{VHF_PL}", SW, "v[26:27]", CMP, soff="s78")
    stamp(a, 8)
    if cfg.stamps: a.e("s_mov_b32 s80, s83")
    def lh(n):
        q, s = n // 12, n % 12
        d = HR + 4 * s; m = s % 6
        def f():
            if m == 0: a.e(f"s_add_u32 s61, s{68+q}, s{92+s//6}")
            if m == 4: a.e("s_add_u32 s61, s61, 4096")
            a.vm(f"buffer_load_dwordx4 {R('v',d,4)}, v{LO}, {srd(SW)}, s61 offen offset:{1024*(m%4)} sc1", regs('v', d, 4))
        return f
    first_w = 60 - len(wl)
    loads = []; hidx = {}
    for n in range(48):
        if n < 12:
            for b in range(5):
                if 5 * n + b >= first_w: loads.append(wl.pop(0))
        hidx[n] = len(loads); loads.append(lh(n))
    pos = 0
    def issue_upto(k):
        nonlocal pos
        while pos <= min(k, len(loads) - 1): loads[pos](); pos += 1
    issue_upto(min(hidx[0] + 11, hidx[cfg.ahead - 1]))
    def reduce_ops(q, packed):
        B0 = (q % 2) * PB
        rd = [(lambda w=w, h=h: a.lds(f"ds_read_b128 {R('v',PART+8*w+4*h,4)}, v97 offset:{B0+w*16*RS+16*h}", regs('v', PART+8*w+4*h, 4))) for w in range(4) for h in range(2)]
        ad = []
        for (x, y) in ((0, 1), (2, 3), (0, 2)):
            if packed:
                for e in range(0, 8, 2):
                    ad.append(lambda x=x, y=y, e=e: (a.need(regs('v', PART+8*x+e, 2) | regs('v', PART+8*y+e, 2)), a.e(f"v_pk_add_f32 {R('v',PART+8*x+e,2)}, {R('v',PART+8*x+e,2)}, {R('v',PART+8*y+e,2)}")))
            else:
                for e in range(8):
                    ad.append(lambda x=x, y=y, e=e: (a.need({('v', PART+8*x+e), ('v', PART+8*y+e)}), a.e(f"v_add_f32 v{PART+8*x+e}, v{PART+8*x+e}, v{PART+8*y+e}")))
        cv = [(lambda e=e: a.e(f"v_cvt_pk_bf16_f32 v{OPK+e}, v{PART+2*e}, v{PART+2*e+1}")) for e in range(4)]
        def st():
            a.vm(f"buffer_store_dwordx4 {R('v',OPK,4)}, v98, {srd(SO)}, s{4+q} offen{cfg.outsc}")
        return rd, ad, cv, st
    def pwrite(q, b):
        a.lds(f"ds_write_b128 v96, {R('v',ACC2[q%2]+4*b,4)} offset:{(q%2)*PB+64*b}", {'PW'})
    def pwrite64(q, h):
        b, e = h // 2, 2 * (h % 2)
        a.lds(f"ds_write_b64 v96, {R('v',ACC2[q%2]+4*b+e,2)} offset:{(q%2)*PB+64*b+4*e}", {'PW'})
    def mm(n, b):
        q, s = n // 12, n % 12
        C = ACC2[q % 2]; A = (s * 5 + b) * 4; B = HR + 4 * s
        a.need(regs('v', B, 4) | regs('a', A, 4))
        a.e(f"v_mfma_f32_16x16x32_bf16 {R('v',C+4*b,4)}, {R('a',A,4)}, {R('v',B,4)}, {'0' if s == 0 else R('v',C+4*b,4)}")
    PWK = [int(x) for x in cfg.pwk.split(",")]; KB = cfg.kbar
    def red_gap(q, k, b):
        if k in PWK:
            if cfg.w64: pwrite64(q - 1, PWK.index(k))
            else: pwrite(q - 1, PWK.index(k))
        if k == KB: a.need({'PW'}); a.e("s_barrier")
        if k > KB and b != 1 and rd: rd.pop(0)()
        elif k > KB + 3 and (len(rd) <= 4):
            for _ in range(2 if (cfg.add2 and b != 1 and not rd) else 1):
                if ad:
                    if len(rd) == 0 or len(ad) > 16: ad.pop(0)()
                elif cv: cv.pop(0)()
                elif stq: stq.pop(0)()
        if k == 59:
            while ad or cv or stq: (ad or cv or stq).pop(0)()
    for n in range(48):
        q, s = n // 12, n % 12
        if n == 1 and not cfg.fine2: stamp(a, 9)
        if cfg.fine2 and n % 4 == 0: a.e(f"s_memtime s[{FP[n//4]}:{FP[n//4]+1}]")
        if q > 0 and s == 0:
            rd, ad, cv, st = reduce_ops(q - 1, False); stq = [st]
        if n == 24 - cfg.ahead:
            a.need({'HF2'})
            spin_until(a, "L_hg", f"v{VHF_PL}", SW, "v[26:27]", CMP, soff="s79")
        for b in range(5):
            mm(n, b)
            if n + cfg.ahead < 48:
                tgt = min(hidx[n + cfg.ahead], hidx[n + 1] + 12)
                rem = tgt + 1 - pos
                k = -(-rem // (5 - b)) if rem > 0 else 0
                if b >= 1 or rem > 1: issue_upto(pos + k - 1)
            if n == 24 - cfg.ahead - cfg.pb and b == 3:
                a.vm(f"buffer_load_dwordx2 v[26:27], v{VHF_PL}, {srd(SW)}, s79 offen sc1", {'HF2'})
            if q > 0: red_gap(q, 5 * s + b, b)
        if q > 0 and s == 11:
            assert not (rd or ad or cv or stq), (len(rd), len(ad), len(cv), len(stq))
    done = 0
    assert pos == len(loads), (pos, len(loads))
    if cfg.fine2: a.e(f"s_memtime s[{FP[12]}:{FP[12]+1}]")
    stamp(a, 10)
    if done == 0: a.e("s_nop 3")
    for b in range(done, 5):
        if b == 4 and done: a.e("s_nop 6")
        pwrite(3, b)
    a.need({'PW'}); a.e("s_barrier")
    rd, ad, cv, st = reduce_ops(3, True)
    for f in rd + ad + cv: f()
    st()
    dump_stamps(a, 12)
    if cfg.fine1:
        a.e("v_add_u32 v31, 0x40000, v31")
        for k in range(7): a.e(f"buffer_store_dword v{100+k}, v31, {srd(SW)}, 0 offen offset:{4*k}")
    if cfg.fine2:
        a.e("v_add_u32 v31, 0x40000, v31")
        for k in range(13): a.e(f"v_mov_b32 v30, s{FP[k]}\nbuffer_store_dword v30, v31, {srd(SW)}, 0 offen offset:{4*k}\ns_nop 1")
    a.label("L_end")
    a.e("s_endpgm")
    a.label("L_wide")
    a.vq = []; a.lq = []
    phase1(a, Wide, mk_wl(a))
    a.e("s_branch L_gate")
    return a.text()

HEADER = """; GEGLU MLP, one launch:  out = (gelu_tanh(x Wg) * (x Wu)) Wd   x[2048,640] Wg,Wu[640,1536] Wd[1536,640] bf16
; @launch grid=(256,1,1) block=(256,1,1) lds=%d
.amdgcn_target "amdgcn-amd-amdhsa--gfx950"
.text
.globl %s_kernel
.p2align 8
.type %s_kernel,@function
%s_kernel:
"""
FOOTER = """.section .rodata,"a"
.p2align 6
.amdhsa_kernel %s_kernel
  .amdhsa_next_free_vgpr 512
  .amdhsa_next_free_sgpr 102
  .amdhsa_accum_offset 256
  .amdhsa_group_segment_fixed_size 0
  .amdhsa_kernarg_size 56
  .amdhsa_user_sgpr_count 2
  .amdhsa_user_sgpr_kernarg_segment_ptr 1
  .amdhsa_system_sgpr_workgroup_id_x 1
  .amdhsa_float_denorm_mode_32 3
.end_amdhsa_kernel
"""
if __name__ == "__main__":
    out = sys.argv[1]
    for kv in sys.argv[2:]:
        k, v = kv.split("=")
        assert hasattr(cfg, k), k
        setattr(cfg, k, (int(v) if v.lstrip('-').isdigit() else v.replace("_", " ")))
    open(out, "w").write(HEADER % (3*STAGE+4*3072, NAME, NAME, NAME) + kernel() + FOOTER % NAME)
```

```python
import math, sys, os
from asmlib import *

NAME = "standalone__glu_gated_geglu__prompt"
H_OFF, WD_OFF, FW_OFF, FH_OFF, ST_OFF, WS_BYTES = 0, 0x600000, 0x7E0000, 0x7F0000, 0x800000, 0x900000
OOB = 0x40000000
STAGE = 40960
K0 = -2.0 * math.log2(math.e) * math.sqrt(2.0 / math.pi)
K1 = K0 * 0.044715
SX, SG_, SU, SD, SW, SO, SDBG = 8, 12, 16, 20, 24, 28, 32
def srd(n): return f"s[{n}:{n+3}]"

class Cfg:
    stamps = 0; fine1 = 0; fine2 = 0; pro = 0
    rot = "xcd"; ftmap = 0; p2map = 1; rho = 0; half = 1; pwk = "3,5,7,9,10,12,14,15,17,19"; kbar = 22; w64 = 1; add2 = 0
    n8 = 7; n9 = 11; nl = 0; n0 = 3; ng = 14; na = 18; nb = 4; gapper = 3
    stp = "3,5,7,9,11,12"
    ahead = 8; pb = 8; spin = 100000; psleep = 0; hsc = " sc1"; outsc = ""
    t1gap = 8; cpf = 0; pre = 100; bar = 4; wst = 0; defst = 1; outsc2 = ""; fbpos = 99; wrpos = 0; stag = 0; nodma = 0; nobar = 0; nord = 0; dpos = "5,10,14,18,22,26,30,34,38,42"; tlb = 0; tlbs = 20
cfg = Cfg()

STV = 136
def stamp(a, i):
    if cfg.stamps:
        a.e(f"s_memrealtime s[84:85]\ns_memtime s[86:87]\ns_waitcnt lgkmcnt(0)\nv_mov_b32 v{STV+2*i}, s84\nv_mov_b32 v{STV+1+2*i}, s86")
        a.lq = []
def dump_stamps(a, n):
    if not cfg.stamps: return
    a.e("s_waitcnt vmcnt(0)")
    stamp(a, n - 1)
    a.e(f"s_lshl_b32 s82, s2, 2\ns_add_u32 s82, s82, s36\ns_lshl_b32 s82, s82, 7\ns_add_u32 s82, s82, {ST_OFF}\nv_mov_b32 v31, s82\ns_mov_b64 exec, 1\nv_mov_b32 v30, s80\nbuffer_store_dword v30, v31, {srd(SW)}, 0 offen offset:96")
    for i in range(0, 2 * n, 2):
        a.e(f"buffer_store_dwordx2 v[{STV+i}:{STV+i+1}], v31, {srd(SW)}, 0 offen offset:{4*i}")

ACC = 160
FP = [8,10,12,14,16,18,20,22,40,42,44,46,48]
LO = 130; VF1 = 133; VF2 = 134; VHF_PL = 135
def acc(i, jm): return ACC + 16 * (2 * i + jm)

class Fill:
    def __init__(self, a, text=""):
        self.a = a; self.q = []
        self.add(text)
    def add(self, text):
        for l in text.split("\n"):
            l = l.strip()
            if l: self.q.append(l.replace("|", "\n"))
    def emit(self, n):
        while n > 0 and self.q:
            c = self.q.pop(0); self.a.e(c); n -= c.count("\n") + 1
    def flush(self): self.emit(1 << 30)

IN = [32, 48]; OUT = 64
HSO = [52, 53, 73, 74, 75, 76]
class Wide:
    n = "W"
    @staticmethod
    def out_rd(a, s, o):
        return [(lambda h=h: a.lds(f"ds_read_b64_tr_b16 {R('v',OUT+4*o+2*h,2)}, v{16+o//2} offset:{16384+12288*(o%2)+(32*s+4*h)*192}", regs('v', OUT+4*o+2*h, 2)), 16 + o // 2) for h in range(2)]
    @staticmethod
    def in_rd(a, s, n):
        return [(lambda: a.lds(f"ds_read_b128 {R('v',IN[s]+4*n,4)}, v{12+s} offset:{2048*n}", regs('v', IN[s]+4*n, 4)), 12 + s)]
    @staticmethod
    def mfma(s, o, n): return OUT + 4*o, IN[s] + 4*n, ACC + 16 * (3 * (n//2) + o//2) + 8 * (o%2) + 4 * (n%2)
    dma = [(43, [(2+i, SX, 40, 1024*i) for i in range(4)]), (44, [(6+i, SG_, 41, 1024*i) for i in range(3)]), (45, [(6+i, SU, 41, 1024*i) for i in range(3)])]
    adv = ""
    last = [(o, 2 * p + h) for p in range(2) for o in range(6) for h in range(2)]
class Tall:
    n = "T"
    @staticmethod
    def out_rd(a, s, o):
        return [(lambda: a.lds(f"ds_read_b128 {R('v',OUT+4*o,4)}, v{12+s} offset:{2048*o}", regs('v', OUT+4*o, 4)), 12 + s)]
    @staticmethod
    def in_rd(a, s, n):
        return [(lambda h=h: a.lds(f"ds_read_b64_tr_b16 {R('v',IN[s]+4*n+2*h,2)}, v{16+n//2} offset:{24576+8192*(n%2)+(32*s+4*h)*128}", regs('v', IN[s]+4*n+2*h, 2)), 16 + n // 2) for h in range(2)]
    @staticmethod
    def mfma(s, o, n): return IN[s] + 4*n, OUT + 4*o, ACC + 16 * (2 * (o//2) + n//2) + 8 * (n%2) + 4 * (o%2)
    dma = [(43, [(2+i, SX, 40, 1024*i) for i in range(4)]), (3, [(2+i, SX, 57, 1024*i) for i in range(2)]), (44, [(6+i, SG_, 41, 1024*i) for i in range(2)]), (45, [(6+i, SU, 41, 1024*i) for i in range(2)])]
    adv = "s_add_u32 s57, s40, 40960"
    last = [(o, n if o % 2 == 0 else 3 - n) for o in range(6) for n in range(4)]

def p1_mfma(a, ty, s, o, n, first=False):
    A, B, D = ty.mfma(s, o, n)
    a.need(regs('v', A, 4) | regs('v', B, 4))
    a.e(f"v_mfma_f32_16x16x32_bf16 {R('v',D,4)}, {R('v',A,4)}, {R('v',B,4)}, {'0' if first else R('v',D,4)}")

def dma_ops(a, ty, tag, split=False):
    ops = []
    for m0src, lst in ty.dma:
        g = lambda m0src=m0src: a.e(f"s_add_u32 m0, s42, s{m0src}" + ("" if split else "\ns_nop 0"))
        g.salu = True; ops.append(g)
        for (v, sr, so, off) in lst:
            ops.append(lambda v=v, sr=sr, so=so, off=off: a.vq.append({tag}) if (cfg.nodma and tag == 'N') else a.vm(f"buffer_load_dwordx4 v{v}, {srd(sr)}, s{so} offen offset:{off} lds", {tag}))
            ops[-1].so = so
    return ops
def dma_advance(a, ty):
    a.e("s_add_u32 s40, s40, 128\ns_add_u32 s41, s41, 196608\ns_cmp_eq_u32 s40, s55\ns_cselect_b32 s40, s50, s40\ns_cselect_b32 s41, s51, s41")
    a.e(f"s_add_u32 s42, s42, {STAGE}\ns_cmp_eq_u32 s42, {3*STAGE}\ns_cselect_b32 s42, 0, s42")
    a.e(ty.adv)
def rd_advance_s(a):
    a.e(f"s_add_u32 s46, s46, {STAGE}\ns_cmp_eq_u32 s46, {3*STAGE}\ns_cselect_b32 s47, {(-2*STAGE) & 0xffffffff:#x}, s49\ns_cselect_b32 s46, 0, s46")

SNAKE = [(k, j if k % 2 == 0 else 3 - j) for k in range(6) for j in range(4)]
def body(a, ty, t_kind, vmops, is_dma, wait_tag, extra=(), fill=None, pre_bar=None):
    BAR = cfg.bar
    slots = [(1, g) for g in range(BAR, 24)] + [(0, g) for g in range(24)] + [(2, g) for g in range(BAR)]
    if t_kind == 'last': slots = slots[:48 - BAR]
    plan = {p: [] for p in slots}
    def cnt(p, t): return sum(c for _, tt, c in plan[p] if tt == t)
    def fits(p, t, c):
        m, v, sc = cnt(p, 'm'), cnt(p, 'v'), cnt(p, 's')
        if p[1] in (23, 11, 19) : sc += 1
        if t == 'm': return m == 0 and v <= 1 and m + v + sc + 1 <= 3
        if t == 'v': return v + c <= (1 if m else 2) and m + v + sc + c <= 3
        return m + v + sc + c <= 3 or (c >= 3 and m + v + sc == 0)
    def place(f, lo, t='m', c=1):
        for n in range(lo, len(slots)):
            if fits(slots[n], t, c): plan[slots[n]].append((f, t, c)); return n
        assert t_kind == 'last' or t != 'm', "no room"
        plan[slots[-1]].append((f, t, c)); return len(slots) - 1
    idx = {p: n for n, p in enumerate(slots)}
    lastuse = {}
    resv = []
    if is_dma and t_kind == 'mid' and cfg.dpos:
        resv = [int(x) for x in cfg.dpos.split(",")]
        for n in resv: plan[slots[n]].append((None, 'm', 1))
    for (seg, s) in ((1, 0), (0, 1)):
        base = idx[(seg, BAR if seg == 1 else 0)]; g0 = BAR if seg == 1 else 0
        for o in range(6):
            lo = base + max(0, 4 * o + 3 - g0)
            for f, av in ty.out_rd(a, s, o):
                lo = place(f, lo); lastuse[av] = max(lastuse.get(av, 0), lo)
        lo = base
        for n in range(4):
            for f, av in ty.in_rd(a, s, n):
                lo = place(f, lo); lastuse[av] = max(lastuse.get(av, 0), lo); lo += 1
    lo = 0
    if t_kind == 'first':
        if not cfg.wrpos:
            for f in extra: plan[slots[23 - BAR - 6]].append((f, 'x', 0))
        lo = 23 - BAR - 5
    else:
        for f in extra: lo = place(f, lo) + 1
    if vmops:
        nv = len(vmops)
        span = 0 if is_dma else min(len(slots) - 1, int(nv * cfg.gapper * 2))
        start = lo if is_dma else len(slots) - 1 - span
        p = start; pend = None
        for k, f in enumerate(vmops):
            if getattr(f, 'salu', False): pend = f; continue
            if resv:
                q = resv.pop(0); pl = plan[slots[q]]; pl[pl.index((None, 'm', 1))] = (f, 'm', 1)
            else: q = place(f, max(p + (1 if pend else 0), start + (k * span) // nv))
            if pend:
                for n in range(q - 1, p - 2, -1):
                    if n < p or fits(slots[n], 's', 1): plan[slots[max(n, p - 1, 0)]].append((pend, 's', 1)); break
                pend = None
            p = q + 1
        lo = p
    if t_kind == 'first' and cfg.wrpos == 1:
        for k, f in enumerate(extra): plan[slots[len(slots) - 4 + k]].append((f, 'm', 1))
    if t_kind != 'last':
        f46 = lambda: a.e(f"s_add_u32 s46, s46, {STAGE}\ns_cmp_eq_u32 s46, {3*STAGE}")
        f46.scc = True
        n = place(f46, 2, 's', 2)
        plan[slots[n + 1]].insert(0, (lambda: a.e(f"s_cselect_b32 s47, {(-2*STAGE) & 0xffffffff:#x}, s49\ns_cselect_b32 s46, 0, s46"), 's', 2))
        for v in sorted(lastuse): place(lambda v=v: a.e(f"v_add_u32 v{v}, s47, v{v}"), max(lastuse[v] + 1, n + 2), 'v')
        if is_dma:
            lm0 = max(i for i, p in enumerate(slots) if any(getattr(f, 'salu', False) for f, _, _ in plan[p]))
            lx = max(i for i, p in enumerate(slots) if any(getattr(f, 'so', 0) in (40, 57) for f, _, _ in plan[p]))
            def sp(txt, lo, hi=None):
                c = txt.count("\n") + 1
                return place(lambda: a.e(txt), lo, 's', c)
            n = sp("s_add_u32 s40, s40, 128", lx + 1)
            n = sp("s_cmp_eq_u32 s40, s55\ns_cselect_b32 s40, s50, s40\ns_cselect_b32 s81, s82, s100", n + 1)
            if ty.adv: sp(ty.adv, n + 1)
            sp("s_add_u32 s41, s41, s81", max(lo, n + 1))
            sp(f"s_add_u32 s42, s42, {STAGE}\ns_cmp_eq_u32 s42, {3*STAGE}\ns_cselect_b32 s42, 0, s42", lm0 + 1)
            if pre_bar: sp("s_sub_u32 s48, s48, 1", 5)
    for (seg, g) in slots:
        k, j = SNAKE[g]
        has_m = not (seg == 1 and t_kind == 'first')
        s = 0 if seg == 0 else 1
        if has_m:
            if g == 0: a.need(regs('v', IN[s], 16) | regs('v', OUT, 12))
            if g == 12: a.need(regs('v', OUT + 12, 8))
            p1_mfma(a, ty, s, k, j, first=(t_kind == 'first' and seg == 0))
        for f, t, c in plan[(seg, g)]:
            f()
            if not has_m and getattr(f, 'salu', False): a.e('s_nop 0')
        while fill and has_m and fill.q:
            x = fill.q[0]; t = 'v' if x.startswith('v_') else 's'; c = x.count("\n") + 1
            if any(getattr(ff, 'scc', False) for ff, _, _ in plan[(seg, g)]) or not fits((seg, g), t, c): break
            plan[(seg, g)].append((None, t, c)); fill.emit(1)
    if fill: fill.flush()
    if t_kind != 'last':
        if pre_bar: a.e(pre_bar)
        l = a._cnt(a.vq, wait_tag)
        a.wait(vm=len(a.vq) - l - 1, lgkm=0)
        if not (cfg.nobar and pre_bar): a.e("s_barrier")

def gelu_all(a, vm_ops, store, stp):
    blocks = [(i, jm) for jm in range(2) for i in range(3)]
    def T(b): return 88 - 56 + 0 + 8 * (b % 2)
    def P(b): return [112, 116, 120, 124, 88, 92][b]
    def pk(op, d, x, y, z=None, mod=""):
        return f"v_pk_{op}_f32 {R('v',d,2)}, {x}, {y}" + (f", {z}" if z else "") + mod
    def S1(b):
        A = ACC + 16 * b; t = T(b)
        return ([pk("mul", t+2*p, R('v',A+2*p,2), R('v',A+2*p,2)) for p in range(4)] +
                [pk("fma", t+2*p, R('v',t+2*p,2), "v[20:21]", "v[22:23]") for p in range(4)] +
                [pk("mul", t+2*p, R('v',t+2*p,2), R('v',A+2*p,2)) for p in range(4)])
    def S3(b):
        A = ACC + 16 * b; t = T(b)
        return ([pk("mul", t+2*p, R('v',t+2*p,2), R('v',A+2*p,2)) for p in range(4)] +
                [pk("mul", t+2*p, R('v',t+2*p,2), R('v',A+8+2*p,2)) for p in range(4)] +
                [f"v_cvt_pk_bf16_f32 v{P(b)+p}, v{t+2*p}, v{t+2*p+1}" for p in (0, 2, 1, 3)])
    vm_ops = list(vm_ops); nv = len(vm_ops); ph = [0]
    def vm_slot():
        ph[0] += 1
        for b in range(6):
            if stp[b] == ph[0] and b < 5: store(b, P(b))
        want = (ph[0] * nv + 11) // 12
        while nv - len(vm_ops) < want and vm_ops: vm_ops.pop(0)()
    for l in S1(0): a.e(l)
    for b in range(6):
        t = T(b)
        other = S3(b - 1) if b > 0 else []
        k = 0
        for r in range(8):
            a.e(f"v_exp_f32 v{t+r}, v{t+r}")
            for _ in range(2 if r < 4 else 1):
                if k < len(other): a.e(other[k]); k += 1
            if r >= 4:
                p = r - 4 if r < 7 else None
                if r == 4 and b > 0: pass
                a.e(pk("add", t+2*(r-4), R('v',t+2*(r-4),2), "1.0", mod=" op_sel_hi:[1,0]")) if r < 7 else None
        if b > 0: a.e(f"v_permlane32_swap_b32 v{P(b-1)}, v{P(b-1)+2}")
        else: a.e("s_nop 0")
        a.e(pk("add", t+6, R('v',t+6,2), "1.0", mod=" op_sel_hi:[1,0]"))
        if b > 0:
            a.e(f"v_permlane32_swap_b32 v{P(b-1)+1}, v{P(b-1)+3}")
        vm_slot()
        other = S1(b + 1) if b < 5 else []
        k = 0
        for r in range(8):
            a.e(f"v_rcp_f32 v{t+r}, v{t+r}")
            for _ in range(2 if r < 4 else 1):
                if k < len(other): a.e(other[k]); k += 1
        vm_slot()
    for l in S3(5): a.e(l)
    a.e(f"v_permlane32_swap_b32 v{P(5)}, v{P(5)+2}\ns_nop 0\nv_permlane32_swap_b32 v{P(5)+1}, v{P(5)+3}")
    if stp[5] == 12: store(5, P(5))
    return P

def spin_until(a, lab, voff, sr, data, cmp, soff=0):
    a.e(cmp)
    a.e(f"s_mov_b32 s83, {cfg.spin}\ns_cbranch_vccz {lab}_ok")
    a.label(f"{lab}_spin")
    if cfg.psleep: a.e(f"s_sleep {cfg.psleep}")
    a.e(f"buffer_load_dwordx2 {data}, {voff}, {srd(sr)}, {soff} offen sc1\ns_waitcnt vmcnt(0)")
    a.e(cmp)
    a.e(f"s_sub_u32 s83, s83, 1\ns_cbranch_vccz {lab}_ok\ns_cmp_lg_u32 s83, 0\ns_cbranch_scc1 {lab}_spin")
    a.label(f"{lab}_ok")

P2L = STAGE
HR = 160; ACC2 = [32, 52]; PART = 208; OPK = 240; RS = 336; PB = 4 * 16 * RS

def div_rows(src, q, r, tmp, magic, sh, d):
    return f"v_mul_u32_u24 {q}, {magic}, {src}\nv_lshrrev_b32 {q}, {sh}, {q}\nv_mul_u32_u24 {tmp}, {d}, {q}\nv_sub_u32 {r}, {src}, {tmp}"

def phase1(a, ty, wl):
    L = lambda x: f"L{ty.n}_{x}"
    tall = ty is Tall
    def take(n):
        r = wl[:n]; del wl[:n]; return r
    rows = 48 if tall else 32
    a.c(f"x DMA voffsets v2..v5: row = {rows}*wave + 8*i + lane/8, chunk = (lane&7) ^ ((row>>1)&7)")
    a.e(f"""v_lshrrev_b32 v108, 3, v1
      v_mad_u32_u24 v108, v107, {rows}, v108
      v_mul_u32_u24 v108, 1280, v108
      v_lshrrev_b32 v109, 4, v1
      v_and_b32 v110, 7, v1
      v_xor_b32 v31, v110, v109
      v_lshl_add_u32 v2, v31, 4, v108
      v_xor_b32 v31, 4, v31
      v_lshl_add_u32 v3, v31, 4, v108
      v_add_u32 v4, {2*9216}, v2
      v_add_u32 v3, 9216, v3
      v_add_u32 v5, {2*9216}, v3""")
    if tall:
        a.c("s37 m-tile (192 rows) = 5*(xcd>>2) + idx/6 ; s38 f-tile (64 columns) = 6*(xcd&3) + idx%6 ; s91 = idx%6")
        a.e(f"""s_mul_i32 s60, s54, 43
          s_lshr_b32 s60, s60, 8
          s_mul_i32 s91, s60, 6
          s_sub_u32 s91, s54, s91
          s_lshr_b32 s37, s39, 2
          s_mul_i32 s37, s37, 5
          s_add_u32 s37, s37, s60
          s_and_b32 s90, s39, 3
          s_mul_i32 s38, s90, 6
          s_add_u32 s38, s38, s91
          s_mul_i32 s50, s37, {192*1280}
          s_mul_i32 s43, s36, 6144
          s_lshl_b32 s51, s38, 7
          s_add_u32 s3, s43, 4096
          s_lshl_b32 s44, s36, 11
          s_add_u32 s45, s44, 32768
          s_add_u32 s44, s44, 24576""")
        a.e("""v_lshrrev_b32 v108, 3, v1
          v_lshl_add_u32 v108, v107, 4, v108
          v_mul_u32_u24 v108, 3072, v108
          v_and_b32 v109, 1, v109
          v_lshlrev_b32 v109, 1, v109
          v_xor_b32 v109, v110, v109
          v_lshl_add_u32 v6, v109, 4, v108
          v_xor_b32 v109, 4, v109
          v_lshl_add_u32 v7, v109, 4, v108""")
        a.e(f"v_add_u32 v7, {8*3072-1024}, v7")
    else:
        a.c("rows 1920..2047 ; s38 f-tile (96 columns) = 4*(xcd&3) + 2*(xcd>>2) + (idx-30) ; s91 = s38 & 3")
        a.e(f"""s_lshr_b32 s91, s39, 2
          s_lshl_b32 s91, s91, 1
          s_add_u32 s91, s91, s54
          s_sub_u32 s91, s91, 30
          s_and_b32 s90, s39, 3
          s_lshl_b32 s38, s90, 2
          s_add_u32 s38, s38, s91
          s_mov_b32 s50, {1920*1280}
          s_lshl_b32 s43, s36, 12
          s_mul_i32 s51, s38, 192
          s_mul_i32 s44, s36, 3072
          s_add_u32 s45, s44, 28672
          s_add_u32 s44, s44, 16384
          v_mul_u32_u24 v107, 49152, v107""")
        for i in range(3):
            src = "v1"
            if i: a.e(f"v_add_u32 v31, {64*i}, v1"); src = "v31"
            a.e(div_rows(src, "v108", "v109", "v109", 43691, 19, 12))
            a.e(f"v_lshrrev_b32 v110, 2, v108\nv_and_b32 v110, 2, v110\nv_xor_b32 v109, v109, v110")
            a.e(f"v_mul_u32_u24 v108, 3072, v108\nv_add_u32 v108, v107, v108")
            if i: a.e(f"v_subrev_u32 v108, {1024*i}, v108")
            a.e(f"v_lshl_add_u32 v{6+i}, v109, 4, v108")
    K0R = {"xcd": "s39", "none": "0"}[cfg.rot]
    a.e(f"""s_lshl_b32 s40, {K0R}, 7
      s_add_u32 s40, s40, s50
      s_mul_i32 s41, {K0R}, 196608
      s_add_u32 s41, s41, s51
      s_add_u32 s55, s50, 1280
      s_mov_b32 s42, 0""")
    a.e(ty.adv)
    a.e("s_waitcnt lgkmcnt(0)")
    stamp(a, 0)
    for f in dma_ops(a, ty, 'T0'): f()
    dma_advance(a, ty)
    a.e(f"s_mov_b32 s{SDBG+2}, 256\ns_mov_b32 s{SDBG+3}, 0x20000\nv_mov_b32 v30, 0")
    if tall:
        a.c("launch tag: workgroup 0 / wave 3 publishes the real-time counter in d_debug")
        a.e("s_lshl_b32 s60, s2, 2\ns_add_u32 s60, s60, s36\ns_cmp_lg_u32 s60, 3\ns_cbranch_scc1 L_notag")
        a.e(f"s_memrealtime s[60:61]\ns_waitcnt lgkmcnt(0)\ns_or_b32 s61, s61, 0x80000000\nv_mov_b32 v24, s60\nv_mov_b32 v25, s61\nbuffer_store_dwordx2 v[24:25], v30, {srd(SDBG)}, 0 offen sc1")
        a.label("L_notag")
    if cfg.cpf:
        a.c("pull the rest of this kernel's code into L2 (loads only)")
        a.e(f"s_getpc_b64 s[96:97]")
        a.label(L("cp"))
        a.e(f"s_add_u32 s96, s96, L_notag-{L('cp')}\ns_addc_u32 s97, s97, -1\ns_mov_b32 s98, L_wide-L_notag\ns_mov_b32 s99, 0x20000\nv_lshlrev_b32 v90, {cfg.cpf}, v0")
        a.vm("buffer_load_dword v91, v90, s[96:99], 0 offen", {"T0"})
    f1 = Fill(a, f"""s_mov_b32 s46, 0
      s_mov_b32 s49, {STAGE}
      s_mov_b32 s100, 196608
      s_mov_b32 s82, {(-9*196608) & 0xffffffff:#x}
      s_mov_b32 s{SD+2}, {1536*640*2}
      s_mov_b32 s{SD+3}, 0x20000
      s_mov_b32 s{SW+2}, {WS_BYTES}
      s_mov_b32 s{SW+3}, 0x20000
      s_mov_b32 s{SO+2}, {2048*640*2}
      s_mov_b32 s{SO+3}, 0x20000
      s_mul_i32 s58, s54, 3
      s_add_u32 s58, s58, s36
      s_mul_i32 s56, s58, {16*1280}
      s_mul_i32 s60, s39, 160
      s_add_u32 s56, s56, s60
      s_cmp_eq_u32 s36, 3|s_cselect_b32 s61, {OOB:#x}, 0
      s_add_u32 s56, s56, s61
      v_cmp_gt_u32 vcc, 32, v1
      s_mul_i32 s62, s36, 3072
      s_add_u32 s62, s62, {3*STAGE}""")
    for i in range(3):
        src = "v1"
        if i: f1.add(f"v_add_u32 v31, {64*i}, v1"); src = "v31"
        f1.add(div_rows(src, "v108", "v109", "v109", 6554, 16, 10))
        f1.add(f"v_mul_u32_u24 v108, 1280, v108\nv_lshl_add_u32 v{112+i}, v109, 4, v108")
        if i: f1.add(f"v_subrev_u32 v{112+i}, {1024*i}, v{112+i}")
    f1.add(f"v_mov_b32 v31, {OOB:#x}\nv_cndmask_b32 v114, v31, v114, vcc")
    f1.add(f"""s_lshr_b32 s63, s36, 1
      s_and_b32 s64, s36, 1
      v_and_b32 v107, 15, v1
      v_lshrrev_b32 v108, 4, v1
      v_bfe_u32 v109, v1, 1, 3
      v_xor_b32 v109, v109, v108
      s_mul_i32 s65, s63, {(96 if tall else 64)*128}
      v_lshlrev_b32 v110, 7, v107
      v_add_u32 v110, s65, v110
      v_lshl_add_u32 v12, v109, 4, v110
      v_xor_b32 v31, 4, v109
      v_lshl_add_u32 v13, v31, 4, v110
      v_bfe_u32 v110, v1, 4, 1
      v_bfe_u32 v109, v1, 2, 2
      v_lshl_add_u32 v31, v108, 3, v109
      v_mul_u32_u24 v31, {128 if tall else 192}, v31
      v_and_b32 v128, 3, v1
      v_lshl_add_u32 v31, v128, 3, v31""")
    if tall:
        f1.add("""s_lshl_b32 s65, s64, 1
          v_bfe_u32 v107, v1, 3, 2
          v_xor_b32 v129, s65, v107
          v_lshl_add_u32 v16, v129, 5, v31
          v_xor_b32 v129, 1, v129
          v_lshl_add_u32 v17, v129, 5, v31""")
    else:
        f1.add("""s_mul_i32 s65, s64, 3
          v_xor_b32 v129, s65, v110
          v_lshl_add_u32 v16, v129, 5, v31
          s_add_u32 s60, s65, 1
          v_xor_b32 v129, s60, v110
          v_lshl_add_u32 v17, v129, 5, v31
          s_add_u32 s60, s65, 2
          v_xor_b32 v129, s60, v110
          v_lshl_add_u32 v18, v129, 5, v31""")
    f1.add("""v_and_b32 v107, 31, v1
      v_lshrrev_b32 v108, 5, v1
      v_lshl_add_u32 v31, v110, 2, v109
      v_mul_u32_u24 v31, 160, v31
      v_lshl_add_u32 v31, v108, 5, v31
      v_lshl_add_u32 v31, v128, 3, v31
      v_add_u32 v115, s62, v31""")
    for f in dma_ops(a, ty, 'T1'):
        if not getattr(f, 'salu', False): f(); f1.emit(cfg.t1gap)
        else: f()
    dma_advance(a, ty)
    f1.flush()
    stamp(a, 1)
    a.need({'T0'})
    a.e("s_barrier")
    stamp(a, 2)
    if cfg.fine1: a.e("s_memtime s[96:97]\ns_waitcnt lgkmcnt(0)\nv_mov_b32 v100, s96")
    f0 = Fill(a, f"""s_lshr_b32 s59, s58, 1
      s_mul_i32 s59, s59, 5120
      s_and_b32 s60, s58, 1
      s_lshl_b32 s60, s60, 9
      s_add_u32 s59, s59, s60
      s_mul_i32 s60, s39, 245760
      s_add_u32 s59, s59, s60
      s_add_u32 s59, s59, s61
      s_add_u32 s59, s59, {WD_OFF}
      v_lshlrev_b32 v31, 4, v107
      v_lshl_add_u32 v31, v108, 10, v31
      v_add_u32 v128, s59, v31
      v_add_u32 v129, 4096, v128
      v_mov_b32 v31, {OOB:#x}
      v_cndmask_b32 v129, v31, v129, vcc
      s_mul_i32 s60, s39, 96
      s_add_u32 s60, s60, s58
      s_lshl_b32 s60, s60, 3
      s_add_u32 s60, s60, s61
      s_add_u32 s60, s60, {FW_OFF}
      v_mov_b32 v29, s60
      s_lshr_b32 s88, s54, 2
      s_and_b32 s58, s39, 6
      s_lshl_b32 s58, s58, 2
      s_add_u32 s88, s88, s58
      s_and_b32 s89, s54, 3
      s_and_b32 s58, s39, 1
      s_lshl_b32 s58, s58, 2
      s_add_u32 s89, s89, s58
      s_and_b32 s59, s88, 1
      s_mul_i32 s59, s59, {6 if cfg.half else 0}
      s_mul_i32 s58, s36, 12
      s_add_u32 s92, s58, s59
      s_xor_b32 s59, s59, 6
      s_add_u32 s93, s58, s59
      s_lshl_b32 s92, s92, 10
      s_lshl_b32 s93, s93, 10
      s_mul_i32 s77, s89, 245760
      s_add_u32 s77, s77, {WD_OFF}
      s_mul_i32 s94, s92, 5
      s_mul_i32 s95, s93, 5
      s_add_u32 s94, s94, s77
      s_add_u32 s95, s95, s77
      v_lshlrev_b32 v{LO}, 4, v1
      s_mul_i32 s60, s89, 96
      s_mul_i32 s61, s36, 24
      s_add_u32 s60, s60, s61
      s_lshl_b32 s60, s60, 3
      s_add_u32 s60, s60, {FW_OFF}
      v_min_u32 v107, 23, v1
      v_lshlrev_b32 v107, 3, v107
      v_add_u32 v28, s60, v107""")
    f8 = Fill(a, f"""v_lshrrev_b32 v107, 5, v1
      v_mul_u32_u24 v107, 49152, v107
      v_and_b32 v108, 31, v1
      v_lshl_add_u32 v19, v108, 4, v107
      v_mov_b32 v20, {f32hex(K1)}
      v_mov_b32 v21, {f32hex(K1)}
      v_mov_b32 v22, {f32hex(K0)}
      v_mov_b32 v23, {f32hex(K0)}
      v_and_b32 v107, 1, v1""")
    if tall:
        f8.add(f"""s_lshl_b32 s60, s37, 1
          s_add_u32 s60, s60, s63
          s_mul_i32 s60, s60, 3
          s_mul_i32 s52, s60, {2*49152}
          s_lshl_b32 s61, s38, 1
          s_add_u32 s61, s61, s64
          s_lshl_b32 s61, s61, 10
          s_add_u32 s52, s52, s61
          s_add_u32 s53, s52, 512
          s_add_u32 s73, s52, {2*49152}
          s_add_u32 s74, s53, {2*49152}
          s_add_u32 s75, s52, {4*49152}
          s_add_u32 s76, s53, {4*49152}
          s_lshl_b32 s60, s60, 2
          s_add_u32 s60, s60, s90
          s_lshl_b32 s60, s60, 4
          s_lshl_b32 s61, s91, 1
          s_add_u32 s61, s61, s64
          s_add_u32 s60, s60, s61
          s_lshl_b32 s60, s60, 3
          s_add_u32 s60, s60, {FH_OFF}
          v_lshlrev_b32 v107, 9, v107
          v_add_u32 v{VF1}, s60, v107
          s_add_u32 s60, s60, 1024
          v_mov_b32 v{VF2}, s60""")
    else:
        f8.add(f"""s_lshl_b32 s60, s63, 1
          s_add_u32 s60, s60, 60
          s_mul_i32 s52, s60, {2*49152}
          s_lshl_b32 s61, s38, 1
          s_add_u32 s61, s61, s64
          s_mul_i32 s61, s61, 1536
          s_add_u32 s52, s52, s61
          s_add_u32 s53, s52, 512
          s_add_u32 s73, s52, 1024
          s_add_u32 s74, s52, {2*49152}
          s_add_u32 s75, s53, {2*49152}
          s_add_u32 s76, s73, {2*49152}
          s_lshl_b32 s60, s60, 2
          s_add_u32 s60, s60, s90
          s_lshl_b32 s60, s60, 4
          s_lshl_b32 s61, s91, 1
          s_add_u32 s61, s61, s64
          s_add_u32 s60, s60, s61
          s_lshl_b32 s60, s60, 3
          s_add_u32 s60, s60, {FH_OFF}
          s_cmp_lt_u32 s61, 4|s_cselect_b32 s61, 64, 0
          v_mul_u32_u24 v107, s61, v107
          v_add_u32 v{VF1}, s60, v107
          v_add_u32 v{VF2}, 512, v{VF1}""")
    f9 = Fill(a, f"""s_mul_i32 s60, s88, 43
      s_lshr_b32 s60, s60, 7
      s_mul_i32 s60, s60, 3
      s_add_u32 s60, s60, 1
      s_cmp_eq_u32 s60, s88|s_cselect_b32 s61, 2, 0
      s_cmp_lt_u32 s88, 30|s_cselect_b32 s61, s61, 0
      s_lshl_b32 s78, s61, 8
      s_xor_b32 s79, s78, 512
      s_lshl_b32 s60, s88, 2
      s_add_u32 s61, s61, s60
      s_mul_i32 s68, s61, 49152
      s_mul_i32 s4, s61, {16*1280}
      s_xor_b32 s61, s61, 2
      s_mul_i32 s70, s61, 49152
      s_mul_i32 s6, s61, {16*1280}
      s_add_u32 s69, s68, 49152
      s_add_u32 s71, s70, 49152
      s_lshl_b32 s60, s60, 1
      s_add_u32 s60, s60, s36
      s_lshl_b32 s60, s60, 7
      s_add_u32 s60, s60, {FH_OFF}
      v_min_u32 v107, 11, v1
      v_lshlrev_b32 v107, 3, v107
      v_add_u32 v{VHF_PL}, s60, v107
      s_mul_i32 s62, s36, {16*RS}
      s_add_u32 s62, s62, {P2L}
      v_and_b32 v107, 15, v1
      v_mul_u32_u24 v107, {RS}, v107
      v_lshrrev_b32 v108, 4, v1
      v_lshl_add_u32 v107, v108, 4, v107
      v_add_u32 v96, s62, v107
      v_min_u32 v31, 39, v1
      """ + div_rows("v31", "v108", "v109", "v109", 6554, 16, 10) + f"""
      s_mul_i32 s62, s36, {4*RS}
      s_add_u32 s62, s62, {P2L}
      v_mul_u32_u24 v107, {RS}, v108
      v_lshl_add_u32 v107, v109, 5, v107
      v_add_u32 v97, s62, v107
      v_cmp_gt_u32 vcc, 40, v1
      v_mul_u32_u24 v108, 1280, v108
      v_lshl_add_u32 v98, v109, 4, v108
      v_mov_b32 v107, {OOB:#x}
      v_cndmask_b32 v98, v107, v98, vcc
      s_mul_i32 s72, s36, {4*1280}
      s_mul_i32 s60, s89, 160
      s_add_u32 s72, s72, s60
      s_add_u32 s4, s4, s72
      s_add_u32 s6, s6, s72
      s_add_u32 s5, s4, {16*1280}
      s_add_u32 s7, s6, {16*1280}""")

    def wr(i):
        def f():
            if i == 0: a.e("s_mov_b32 m0, s62\ns_nop 0")
            a.vm(f"buffer_load_dwordx4 v{112+i}, {srd(SD)}, s56 offen offset:{1024*i} lds", {'WR'})
        return f
    pretouch = []
    if cfg.tlb & 1: pretouch.append(lambda: (a.e(f"v_lshlrev_b32 v90, {cfg.tlbs}, v1"), a.vm(f"buffer_load_dword v91, v90, {srd(SW)}, 0 offen", {'PT'})))
    if cfg.tlb & 2: pretouch.append(lambda: (a.e(f"v_lshlrev_b32 v90, {cfg.tlbs}, v1"), a.vm(f"buffer_load_dword v92, v90, {srd(SO)}, 0 offen", {'PT'})))
    def ldtag(): a.vm(f"buffer_load_dwordx2 v[24:25], v30, {srd(SDBG)}, 0 offen sc1", {'TAG'})
    body(a, ty, 'first', dma_ops(a, ty, 'T2', True), True, {'T1'}, extra=pretouch + ([wr(0), wr(1), wr(2), ldtag] if cfg.wrpos < 2 else []), fill=f0)
    if cfg.fine1: a.e("s_memtime s[96:97]\ns_waitcnt lgkmcnt(0)\nv_mov_b32 v101, s96")
    a.e("s_getpc_b64 s[66:67]")
    a.label(L("pc"))
    first_exit = 'exit0' if cfg.wrpos == 2 else 'exit1'
    a.e(f"s_add_u32 s66, s66, {L(first_exit)}-{L('pc')}\ns_addc_u32 s67, s67, 0")
    a.e("s_and_b32 s101, s54, 1\ns_add_u32 s48, s101, 1" if cfg.stag else "s_mov_b32 s48, 1")
    a.label(L("loop"))
    a.vq = [{'P'}] * 10
    body(a, ty, 'mid', dma_ops(a, ty, 'N', True), True, {'P'}, pre_bar="s_cmp_lg_u32 s48, 0")
    a.e(f"s_cbranch_scc1 {L('loop')}\ns_setpc_b64 s[66:67]")
    def again(frm, to, n): a.e(f"s_add_u32 s66, s66, {L(to)}-{L(frm)}\ns_addc_u32 s67, s67, 0\ns_mov_b32 s48, {n}")
    if cfg.wrpos == 2:
        a.label(L("exit0"))
        for f in (wr(0), wr(1), wr(2), ldtag): f()
        again("exit0", "exit1", 1); a.e(f"s_branch {L('loop')}")
    a.label(L("exit1"))
    if cfg.fine1: a.e("s_memtime s[96:97]\ns_waitcnt lgkmcnt(0)\nv_mov_b32 v102, s96")
    a.c("re-tile the raw Wd piece (landed: older than the tile waited for) and write it out")
    for o in range(3):
        for j in range(2):
            d = 116 + 4*o + 2*j
            a.lds(f"ds_read_b64_tr_b16 {R('v',d,2)}, v115 offset:{64*o+1280*j}", regs('v', d, 2))
    again("exit1", "exit2", 1)
    for o in range(3):
        d = 116 + 4*o
        a.need(regs('v', d, 4))
        a.e(f"buffer_store_dwordx4 {R('v',d,4)}, v{128 if o < 2 else 129}, {srd(SW)}, 0 offen offset:{2048*o if o < 2 else 0} sc1")
    a.e(f"s_branch {L('loop')}")
    a.label(L("exit2"))
    if cfg.fine1: a.e("s_memtime s[96:97]\ns_waitcnt lgkmcnt(0)\nv_mov_b32 v103, s96")
    spin_until(a, L("tag"), "v30", SDBG, "v[24:25]", "v_cmp_eq_u32 vcc, 0, v25\ns_nop 1")
    a.e(f"buffer_store_dwordx2 v[24:25], v29, {srd(SW)}, 0 offen sc1")
    nrem = 3 if cfg.wrpos == 2 else 4
    again("exit2", "exit3", nrem)
    if cfg.stag: a.e("s_sub_u32 s48, s48, s101")
    a.e(f"s_branch {L('loop')}")
    a.label(L("exit3"))
    if cfg.fine1: a.e("s_memtime s[96:97]\ns_waitcnt lgkmcnt(0)\nv_mov_b32 v104, s96")
    a.e(f"buffer_load_dwordx2 v[26:27], v28, {srd(SW)}, 0 offen sc1")
    again("exit3", "exit4", 1); a.e(f"s_branch {L('loop')}")
    a.label(L("exit4"))
    if cfg.fine1: a.e("s_memtime s[96:97]\ns_waitcnt lgkmcnt(0)\nv_mov_b32 v105, s96")
    spin_until(a, L("wf"), "v28", SW, "v[26:27]", "v_cmp_ne_u64 vcc, v[24:25], v[26:27]\ns_nop 1")
    stamp(a, 3)
    a.vq = [{'P'}] * 10
    body(a, ty, 'mid', take(cfg.n8), False, {'P'}, fill=f8)
    if cfg.fine1: a.e("s_memtime s[96:97]\ns_waitcnt lgkmcnt(0)\nv_mov_b32 v106, s96")
    body(a, ty, 'last', take(cfg.n9), False, None, fill=f9)
    lastw = take(cfg.nl)
    for n, (o, i) in enumerate(ty.last):
        p1_mfma(a, ty, 1, o, i)
        if n % 6 == 3 and lastw: lastw.pop(0)()

def mk_wl(a):
    def lw(n):
        h, m = n // 30, n % 30
        def f():
            if m and m % 4 == 0: a.e(f"s_add_u32 s{94+h}, s{94+h}, 4096")
            a.vm(f"buffer_load_dwordx4 {R('a',4*n,4)}, v{LO}, {srd(SW)}, s{94+h} offen offset:{1024*(m%4)} sc1", regs('a', 4*n, 4))
        return f
    return [lw(n) for n in range(60)]

def kernel():
    a = Asm()
    a.e("s_cmp_ge_u32 s2, 256\ns_cbranch_scc1 L_end")
    for n, off in ((SX, 0), (SG_, 8), (SU, 16), (SD, 24), (SW, 48), (SDBG, 40), (SO, 32)):
        a.e(f"s_load_dwordx2 s[{n}:{n+1}], s[0:1], {off}")
    a.e("v_lshrrev_b32 v107, 6, v0\nv_and_b32 v1, 63, v0\nv_readfirstlane_b32 s36, v107")
    for n, size in ((SX, 2048*640*2), (SG_, 640*1536*2), (SU, 640*1536*2)): a.e(f"s_mov_b32 s{n+2}, {size}\ns_mov_b32 s{n+3}, 0x20000")
    a.e("s_and_b32 s39, s2, 7\ns_lshr_b32 s54, s2, 3\ns_cmp_ge_u32 s54, 30\ns_cbranch_scc1 L_wide")
    wl = mk_wl(a)
    phase1(a, Tall, wl)
    a.label("L_gate")
    def take(n):
        r = wl[:n]; del wl[:n]; return r
    stamp(a, 4)
    def hstore(b, P):
        a.vm(f"buffer_store_dwordx4 {R('v',P,4)}, v19, {srd(SW)}, s{HSO[b]} offen{cfg.hsc}", {'HS%d' % (b // 4)})
    stp = [int(x) for x in cfg.stp.split(",")]
    assert all(stp[b] >= 2 * b + 3 or (b == 5 and stp[b] >= 12) for b in range(6)) and stp == sorted(stp) and stp[3] <= 12
    P = gelu_all(a, take(cfg.ng), hstore, stp)
    stamp(a, 5)
    CMP = "v_cmp_ne_u64 vcc, v[24:25], v[26:27]\ns_nop 1"
    for f in take(cfg.n0): f()
    a.need({'HS0'})
    a.vm(f"buffer_store_dwordx2 v[24:25], v{VF1}, {srd(SW)}, 0 offen sc1")
    stamp(a, 6)
    late = {stp[b] - 12: b for b in range(6) if stp[b] > 12}
    post = take(cfg.na) + [lambda: a.vm(f"buffer_load_dwordx2 v[26:27], v{VHF_PL}, {srd(SW)}, s78 offen sc1", {'HF'})] + take(cfg.nb)
    for k, f in enumerate(post):
        f()
        if k + 1 in late: b = late.pop(k + 1); hstore(b, P(b))
        if k + 1 == min(cfg.fbpos, len(post)):
            assert not late
            a.need({'HS1'})
            a.vm(f"buffer_store_dwordx2 v[24:25], v{VF2}, {srd(SW)}, 0 offen sc1")
    a.need({'HF'})
    stamp(a, 7)
    spin_until(a, "L_hf", f"v{VHF_PL}", SW, "v[26:27]", CMP, soff="s78")
    stamp(a, 8)
    if cfg.stamps: a.e("s_mov_b32 s80, s83")
    def lh(n):
        q, s = n // 12, n % 12
        d = HR + 4 * s; m = s % 6
        def f():
            if m == 0: a.e(f"s_add_u32 s61, s{68+q}, s{92+s//6}")
            if m == 4: a.e("s_add_u32 s61, s61, 4096")
            a.vm(f"buffer_load_dwordx4 {R('v',d,4)}, v{LO}, {srd(SW)}, s61 offen offset:{1024*(m%4)} sc1", regs('v', d, 4))
        return f
    first_w = 60 - len(wl)
    loads = []; hidx = {}
    for n in range(48):
        if n < 12:
            for b in range(5):
                if 5 * n + b >= first_w: loads.append(wl.pop(0))
        hidx[n] = len(loads); loads.append(lh(n))
    pos = 0
    def issue_upto(k):
        nonlocal pos
        while pos <= min(k, len(loads) - 1): loads[pos](); pos += 1
    issue_upto(min(hidx[0] + 11, hidx[cfg.ahead - 1]))
    def reduce_ops(q, packed):
        B0 = (q % 2) * PB
        rd = [(lambda w=w, h=h: a.lds(f"ds_read_b128 {R('v',PART+8*w+4*h,4)}, v97 offset:{B0+w*16*RS+16*h}", regs('v', PART+8*w+4*h, 4))) for w in range(4) for h in range(2)]
        ad = []
        for (x, y) in ((0, 1), (2, 3), (0, 2)):
            if packed:
                for e in range(0, 8, 2):
                    ad.append(lambda x=x, y=y, e=e: (a.need(regs('v', PART+8*x+e, 2) | regs('v', PART+8*y+e, 2)), a.e(f"v_pk_add_f32 {R('v',PART+8*x+e,2)}, {R('v',PART+8*x+e,2)}, {R('v',PART+8*y+e,2)}")))
            else:
                for e in range(8):
                    ad.append(lambda x=x, y=y, e=e: (a.need({('v', PART+8*x+e), ('v', PART+8*y+e)}), a.e(f"v_add_f32 v{PART+8*x+e}, v{PART+8*x+e}, v{PART+8*y+e}")))
        cv = [(lambda e=e: a.e(f"v_cvt_pk_bf16_f32 v{OPK+4*q+e}, v{PART+2*e}, v{PART+2*e+1}")) for e in range(4)]
        def st():
            a.vm(f"buffer_store_dwordx4 {R('v',OPK+4*q,4)}, v98, {srd(SO)}, s{4+q} offen{cfg.outsc if q < 3 else cfg.outsc2}")
        return rd, ad, cv, st
    def pwrite(q, b):
        a.lds(f"ds_write_b128 v96, {R('v',ACC2[q%2]+4*b,4)} offset:{(q%2)*PB+64*b}", {'PW'})
    def pwrite64(q, h):
        b, e = h // 2, 2 * (h % 2)
        a.lds(f"ds_write_b64 v96, {R('v',ACC2[q%2]+4*b+e,2)} offset:{(q%2)*PB+64*b+4*e}", {'PW'})
    def mm(n, b):
        q, s = n // 12, n % 12
        C = ACC2[q % 2]; A = (s * 5 + b) * 4; B = HR + 4 * s
        a.need(regs('v', B, 4) | regs('a', A, 4))
        a.e(f"v_mfma_f32_16x16x32_bf16 {R('v',C+4*b,4)}, {R('a',A,4)}, {R('v',B,4)}, {'0' if s == 0 else R('v',C+4*b,4)}")
    held = []
    PWK = [int(x) for x in cfg.pwk.split(",")]; KB = cfg.kbar
    def red_gap(q, k, b):
        if k in PWK:
            if cfg.w64: pwrite64(q - 1, PWK.index(k))
            else: pwrite(q - 1, PWK.index(k))
        if k == KB: a.need({'PW'}); a.e("s_barrier")
        if k > KB and b != 1 and rd: rd.pop(0)()
        elif k > KB + 3 and (len(rd) <= 4):
            for _ in range(2 if (cfg.add2 and b != 1 and not rd) else 1):
                if ad:
                    if len(rd) == 0 or len(ad) > 16: ad.pop(0)()
                elif cv: cv.pop(0)()
                elif stq: stq.pop(0)()
        if k == 59:
            while ad or cv or stq: (ad or cv or stq).pop(0)()
    for n in range(48):
        q, s = n // 12, n % 12
        if n == 1 and not cfg.fine2: stamp(a, 9)
        if cfg.fine2 and n % 4 == 0: a.e(f"s_memtime s[{FP[n//4]}:{FP[n//4]+1}]")
        if q > 0 and s == 0:
            rd, ad, cv, st = reduce_ops(q - 1, False); stq = [st]
            if cfg.defst and q < 3: held.append(stq.pop())
        if n == 24 - cfg.ahead:
            a.need({'HF2'})
            spin_until(a, "L_hg", f"v{VHF_PL}", SW, "v[26:27]", CMP, soff="s79")
        for b in range(5):
            mm(n, b)
            if n + cfg.ahead < 48:
                tgt = min(hidx[n + cfg.ahead], hidx[n + 1] + 12)
                rem = tgt + 1 - pos
                k = -(-rem // (5 - b)) if rem > 0 else 0
                if b >= 1 or rem > 1: issue_upto(pos + k - 1)
            if n == 24 - cfg.ahead - cfg.pb and b == 3:
                a.vm(f"buffer_load_dwordx2 v[26:27], v{VHF_PL}, {srd(SW)}, s79 offen sc1", {'HF2'})
            if q > 0: red_gap(q, 5 * s + b, b)
            if held and pos == len(loads) and n + cfg.ahead >= 48 and b == 1: held.pop(0)()
        if q > 0 and s == 11:
            assert not (rd or ad or cv or stq), (len(rd), len(ad), len(cv), len(stq))
    done = 0
    assert pos == len(loads), (pos, len(loads))
    if cfg.fine2: a.e(f"s_memtime s[{FP[12]}:{FP[12]+1}]")
    stamp(a, 10)
    if done == 0: a.e("s_nop 3")
    for b in range(done, 5):
        if b == 4 and done: a.e("s_nop 6")
        pwrite(3, b)
    a.need({'PW'}); a.e("s_barrier")
    rd, ad, cv, st = reduce_ops(3, True)
    for f in rd + ad + cv: f()
    st()
    dump_stamps(a, 12)
    if cfg.fine1:
        a.e("v_add_u32 v31, 0x40000, v31")
        for k in range(7): a.e(f"buffer_store_dword v{100+k}, v31, {srd(SW)}, 0 offen offset:{4*k}")
    if cfg.fine2:
        a.e("v_add_u32 v31, 0x40000, v31")
        for k in range(13): a.e(f"v_mov_b32 v30, s{FP[k]}\nbuffer_store_dword v30, v31, {srd(SW)}, 0 offen offset:{4*k}\ns_nop 1")
    a.label("L_end")
    a.e("s_endpgm")
    a.label("L_wide")
    a.vq = []; a.lq = []
    phase1(a, Wide, mk_wl(a))
    a.e("s_branch L_gate")
    return a.text()

HEADER = """; GEGLU MLP, one launch:  out = (gelu_tanh(x Wg) * (x Wu)) Wd   x[2048,640] Wg,Wu[640,1536] Wd[1536,640] bf16
; @launch grid=(256,1,1) block=(256,1,1) lds=%d
.amdgcn_target "amdgcn-amd-amdhsa--gfx950"
.text
.globl %s_kernel
.p2align 8
.type %s_kernel,@function
%s_kernel:
"""
FOOTER = """.section .rodata,"a"
.p2align 6
.amdhsa_kernel %s_kernel
  .amdhsa_next_free_vgpr 512
  .amdhsa_next_free_sgpr 102
  .amdhsa_accum_offset 256
  .amdhsa_group_segment_fixed_size 0
  .amdhsa_kernarg_size 56
  .amdhsa_user_sgpr_count 2
  .amdhsa_user_sgpr_kernarg_segment_ptr 1
  .amdhsa_system_sgpr_workgroup_id_x 1
  .amdhsa_float_denorm_mode_32 3
.end_amdhsa_kernel
"""
if __name__ == "__main__":
    out = sys.argv[1]
    for kv in sys.argv[2:]:
        k, v = kv.split("=")
        assert hasattr(cfg, k), k
        setattr(cfg, k, (int(v) if v.lstrip('-').isdigit() else v.replace("_", " ")))
    open(out, "w").write(HEADER % (3*STAGE+4*3072, NAME, NAME, NAME) + kernel() + FOOTER % NAME)
```
